```python
import torch

def _softmax(x, axis=-1):
    return torch.softmax(x, dim=axis)

def _gelu(x):
    return torch.nn.functional.gelu(x, approximate='tanh')

def _silu(x):
    return torch.nn.functional.silu(x)

def _sigmoid(x):
    return torch.sigmoid(x)

def _layernorm(x, axis=-1, eps=1e-05):
    m = x.mean(dim=axis, keepdim=True)
    v = x.var(dim=axis, keepdim=True, unbiased=False)
    return (x - m) / torch.sqrt(v + eps)

def _scatter_add(tgt, idx, src, axis=0):
    return tgt.clone().index_add_(axis, idx, src)

def _segment_sum(src, seg, n):
    out = torch.zeros((n,) + src.shape[1:], dtype=src.dtype)
    return out.index_add_(0, seg, src)

def _pad(x, pw):
    flat = tuple((v for pair in reversed(pw) for v in pair))
    return torch.nn.functional.pad(x, flat)
kernel_name = 'standalone__tensor_product_equiv_equiformer__graph'

def setup_inputs():

    _w = lambda a: (lambda t: t.to(torch.bfloat16) if t.is_floating_point() else t)(torch.as_tensor(a))
    N, deg, C, De = (10000, 32, 128, max(16, 1))
    E = N * deg
    src = (lambda lo, hi, *s: torch.randint(lo, hi, s))(0, N, E).to(torch.int64)
    dst = (lambda lo, hi, *s: torch.randint(lo, hi, s))(0, N, E).to(torch.int64)
    rvec = (lambda *s: torch.randn(*s, dtype=torch.bfloat16) * 0.05)(E, 3).to(float)
    rn = (torch.linalg.norm(rvec, dim=-1, keepdim=True) + 1e-06).to(float)
    rhat = (rvec / rn).to(float)
    eps = torch.zeros((3, 3, 3), dtype=float)
    eps[0, 1, 2] = eps[1, 2, 0] = eps[2, 0, 1] = 1.0
    eps[0, 2, 1] = eps[2, 1, 0] = eps[1, 0, 2] = -1.0
    return {'x': _w((lambda *s: torch.randn(*s, dtype=torch.bfloat16) * 0.2)(N, 4 * C).to(float)), 'rhat': _w(rhat), 'e_attr': _w((lambda *s: torch.randn(*s, dtype=torch.bfloat16) * 0.2)(E, De).to(float)), 'src': _w(src), 'dst': _w(dst), 'w_rad': _w((lambda *s: torch.randn(*s, dtype=torch.bfloat16) * 0.2)(De, 5 * C).to(float)), 'w_si0': _w((lambda *s: torch.randn(*s, dtype=torch.bfloat16) * 0.2)(2 * C, C).to(float)), 'w_si1': _w((lambda *s: torch.randn(*s, dtype=torch.bfloat16) * 0.05)(3 * C, C).to(float)), 'cg_eps': _w(eps)}

def reference(x, rhat, e_attr, src, dst, w_rad, w_si0, w_si1, cg_eps):
    N = x.shape[0]
    C = w_si0.shape[1]
    E = rhat.shape[0]
    x0 = x[:, :C].clone()
    x1 = x[:, C:].reshape(N, 3, C)
    R = (e_attr @ w_rad).reshape(E, 5, C)
    f0 = x0[src]
    f1 = x1[src]
    Y1 = rhat
    p00_0 = f0 * R[:, 0, :]
    p11_0 = torch.einsum('ejc,ej->ec', f1, Y1) * R[:, 1, :]
    p01_1 = torch.einsum('ec,ej->ejc', f0, Y1) * R[:, 2, :][:, None, :]
    p10_1 = f1 * R[:, 3, :][:, None, :]
    p11_1 = torch.einsum('ijk,ekc,ej->eic', cg_eps, f1, Y1) * R[:, 4, :][:, None, :]
    m0 = torch.concatenate([p00_0, p11_0], axis=-1) @ w_si0
    m1 = torch.einsum('ejp,pc->ejc', torch.concatenate([p01_1, p10_1, p11_1], axis=-1), w_si1)
    agg0 = _segment_sum(m0, dst, N)
    agg1 = _segment_sum(m1.reshape(E, 3 * C), dst, N).reshape(N, 3, C)
    gate = _sigmoid(agg0)
    out1 = agg1 * gate[:, None, :]
    return torch.concatenate([agg0, out1.reshape(N, 3 * C)], axis=-1)
```

```python
class Asm:
    def __init__(self):
        self.L = []
    def __call__(self, s):
        for line in s.split('\n'):
            line = line.strip()
            if line:
                if line.endswith(':') or line.startswith('.') or line.startswith(';'):
                    self.L.append(line)
                else:
                    self.L.append('    ' + line)
    def text(self):
        return '\n'.join(self.L) + '\n'

def vr(a, n=1):
    return f'v{a}' if n == 1 else f'v[{a}:{a+n-1}]'
def sr(a, n=1):
    return f's{a}' if n == 1 else f's[{a}:{a+n-1}]'

class Alloc:
    def __init__(self, start, limit):
        self.p = start; self.limit = limit; self.names = {}
    def get(self, name, n=1, align=1):
        self.p = (self.p + align - 1) // align * align
        r = self.p; self.p += n
        assert self.p <= self.limit, f'out of regs at {name}: {self.p}'
        self.names[name] = (r, n)
        return r

def srd(A, s, base, nbytes):
    A(f's_mov_b32 s{s}, s{base}')
    A(f's_and_b32 s{s+1}, s{base+1}, 0xffff')
    A(f's_mov_b32 s{s+2}, {nbytes}')
    A(f's_mov_b32 s{s+3}, 0x20000')

def kd(name, vgpr, sgpr):
    acc = (vgpr + 3) // 4 * 4
    return f'''.amdhsa_kernel {name}
  .amdhsa_next_free_vgpr {vgpr}
  .amdhsa_next_free_sgpr {sgpr}
  .amdhsa_accum_offset {acc}
  .amdhsa_group_segment_fixed_size 0
  .amdhsa_kernarg_size 96
  .amdhsa_user_sgpr_count 2
  .amdhsa_user_sgpr_kernarg_segment_ptr 1
  .amdhsa_system_sgpr_workgroup_id_x 1
.end_amdhsa_kernel'''
```

```python
N = 10000; E = 320000; C = 128
NB = 250; NPB = 40
G1 = 125; G1P = 128; EPW = 2560
CAP = 32; CELL = 384
K1_THREADS = 640
K1_GRID = G1 + 16 + 4
WS_CELLS = 0
WS_WSI = NB * G1P * CELL
WS_WRAD = WS_WSI + 160 * 1024
WS_USED = WS_WRAD + 40 * 1024
K1_NAME = 'tp_prep_kernel'
K2_NAME = 'standalone__tensor_product_equiv_equiformer__graph_kernel'
```

```python
from asmlib import *
from common import *

def gen_k1(A, opt):
    name = K1_NAME
    A(f'.globl {name}\n.p2align 8\n.type {name},@function\n{name}:')
    A(f's_cmp_ge_u32 s2, {K1_GRID}')
    A('s_cbranch_scc1 K1_end')
    A('s_load_dwordx2 s[4:5], s[0:1], 8')
    A('s_load_dwordx4 s[8:11], s[0:1], 24')
    A('s_load_dwordx4 s[12:15], s[0:1], 40')
    A('s_load_dwordx2 s[16:17], s[0:1], 56')
    A('s_load_dwordx2 s[18:19], s[0:1], 88')
    A(f's_cmp_ge_u32 s2, {G1}')
    A('s_cbranch_scc1 K1_wprep')
    CNT = NB * CELL
    DUM = CNT + 1024
    A('v_and_b32 v1, 255, v0')
    A('v_lshlrev_b32 v1, 2, v1')
    A('v_mov_b32 v2, 0')
    A(f'v_add_u32 v1, {CNT}, v1')
    A('ds_write_b32 v1, v2')
    A('v_lshlrev_b32 v3, 4, v0')
    A('v_mul_u32_u24 v4, 24, v0')
    A(f's_mul_i32 s3, s2, {EPW*4}')
    A(f's_mul_i32 s20, s2, {EPW*6}')
    A(f's_mul_i32 s21, s2, {EPW}')
    A('s_waitcnt lgkmcnt(0)')
    srd(A, 24, 10, E*4)
    srd(A, 28, 8, E*4)
    srd(A, 32, 4, E*6)
    srd(A, 36, 18, WS_USED)
    A('buffer_load_dwordx4 v[8:11], v3, s[24:27], s3 offen')
    A('buffer_load_dwordx4 v[12:15], v3, s[28:31], s3 offen')
    A('buffer_load_dwordx4 v[16:19], v4, s[32:35], s20 offen')
    A('buffer_load_dwordx2 v[20:21], v4, s[32:35], s20 offen offset:16')
    A('v_lshl_add_u32 v5, v0, 2, s21')
    A('v_mov_b32 v6, 1')
    A('s_mov_b32 s22, 52429')
    A('s_mov_b32 s23, 0x05040100')
    A('s_barrier')
    A('s_waitcnt vmcnt(3)')
    for i in range(4):
        A(f'v_mul_u32_u24 v{22+i}, s22, v{8+i}')
    for i in range(4):
        A(f'v_lshrrev_b32 v{22+i}, 21, v{22+i}')
    for i in range(4):
        A(f'v_min_u32 v{22+i}, {NB-1}, v{22+i}')
    for i in range(4):
        A(f'v_lshlrev_b32 v{34+i}, 2, v{22+i}')
    for i in range(4):
        A(f'v_add_u32 v{34+i}, {CNT}, v{34+i}')
        A(f'ds_add_rtn_u32 v{26+i}, v{34+i}, v6')
    for i in range(4):
        A(f'v_mul_u32_u24 v{30+i}, {NPB}, v{22+i}')
        A(f'v_sub_u32 v{30+i}, v{8+i}, v{30+i}')
        A(f'v_and_b32 v{30+i}, 63, v{30+i}')
        A(f'v_add_u32 v7, {i}, v5')
        A(f'v_lshl_or_b32 v{30+i}, v{30+i}, 19, v7')
        A(f'v_mul_u32_u24 v{22+i}, {CELL}, v{22+i}')
    A('s_waitcnt vmcnt(0)')
    A('v_mov_b32 v40, v16')
    A('v_perm_b32 v41, v12, v17, s23')
    A('v_alignbit_b32 v42, v18, v17, 16')
    A('v_alignbit_b32 v43, v13, v18, 16')
    A('v_mov_b32 v44, v19')
    A('v_perm_b32 v45, v14, v20, s23')
    A('v_alignbit_b32 v46, v21, v20, 16')
    A('v_alignbit_b32 v47, v15, v21, 16')
    A(f'v_mov_b32 v48, {DUM}')
    A('s_waitcnt lgkmcnt(0)')
    for i in range(4):
        A(f'v_cmp_gt_u32 vcc, {CAP}, v{26+i}')
        A(f'v_lshl_add_u32 v{34+i}, v{26+i}, 2, v{22+i}')
        A(f'v_lshl_add_u32 v{8+i}, v{26+i}, 3, v{22+i}')
        A(f'v_cndmask_b32 v{34+i}, v48, v{34+i}, vcc')
        A(f'v_cndmask_b32 v{8+i}, v48, v{8+i}, vcc')
        A(f'ds_write_b32 v{34+i}, v{30+i}')
        A(f'ds_write_b64 v{8+i}, v[{40+2*i}:{41+2*i}] offset:128')
    A('v_lshrrev_b32 v1, 4, v0')
    A('v_and_b32 v2, 15, v0')
    A(f'v_mul_u32_u24 v3, {CELL}, v1')
    A('v_lshl_add_u32 v3, v2, 4, v3')
    A('v_lshlrev_b32 v4, 2, v1')
    A(f'v_add_u32 v4, {CNT}, v4')
    A(f's_mov_b32 s22, {G1P*CELL}')
    A('v_mul_lo_u32 v5, s22, v1')
    A('v_lshl_add_u32 v5, v2, 4, v5')
    A(f's_mul_i32 s3, s2, {CELL}')
    A('v_lshlrev_b32 v6, 2, v2')
    A('v_subrev_u32 v7, 8, v2')
    A('v_lshlrev_b32 v7, 1, v7')
    A('v_cmp_gt_u32 vcc, 8, v2')
    A('s_nop 1')
    A('v_cndmask_b32 v6, v7, v6, vcc')
    A('v_cmp_eq_u32 s[40:41], 0, v2')
    A('v_lshl_add_u32 v7, v2, 1, 16')
    A('s_waitcnt lgkmcnt(0)')
    A('s_barrier')
    CPR = K1_THREADS // 16
    NR = (NB + CPR - 1) // CPR
    for r in range(NR):
        off = r * CPR * CELL
        if off + 0 > 65535 - 256:
            if r * CPR * CELL - CPR * CELL <= 65535 - 256:
                A(f'v_add_u32 v49, {off}, v3'); base2 = off
            A(f'ds_read_b128 v[{52+4*r}:{55+4*r}], v49 offset:{off-base2}')
        else:
            A(f'ds_read_b128 v[{52+4*r}:{55+4*r}], v3 offset:{off}')
        A(f'ds_read_b32 v{8+r}, v4 offset:{r*CPR*4}')
    for r in range(NR):
        A(f's_waitcnt lgkmcnt({2*(NR-1-r)})')
        A(f'v_min_u32 v20, 127, v{8+r}')
        A(f'v_and_b32 v21, 0x1ffffff, v{52+4*r}')
        A('v_lshl_or_b32 v21, v20, 25, v21')
        A(f'v_cndmask_b32 v{52+4*r}, v{52+4*r}, v21, s[40:41]')
        A(f'v_cmp_lt_u32 vcc, v6, v{8+r}')
        A('s_or_b64 vcc, vcc, s[40:41]')
        if (r + 1) * CPR > NB:
            A(f'v_cmp_gt_u32 s[42:43], {NB - r*CPR}, v1')
            A('s_and_b64 vcc, vcc, s[42:43]')
        A('s_and_saveexec_b64 s[44:45], vcc')
        A(f's_cbranch_execz K1_skip{r}')
        A(f'buffer_store_dwordx4 v[{52+4*r}:{55+4*r}], v5, s[36:39], s3 offen {opt.get("k1_st","")}')
        A(f'K1_skip{r}:')
        A('s_mov_b64 exec, s[44:45]')
        A(f'v_cmp_lt_u32 vcc, v7, v{8+r}')
        A(f'v_cmp_gt_u32 s[42:43], 8, v2')
        A('s_and_b64 vcc, vcc, s[42:43]')
        if (r + 1) * CPR > NB:
            A(f'v_cmp_gt_u32 s[42:43], {NB - r*CPR}, v1')
            A('s_and_b64 vcc, vcc, s[42:43]')
        A('s_and_saveexec_b64 s[44:45], vcc')
        A(f's_cbranch_execz K1_skipb{r}')
        A(f'v_add_u32 v20, {r*CPR*CELL+256}, v3')
        A('ds_read_b128 v[24:27], v20')
        A('s_waitcnt lgkmcnt(0)')
        A(f'buffer_store_dwordx4 v[24:27], v5, s[36:39], s3 offen offset:256 {opt.get("k1_st","")}')
        A('s_nop 1')
        A(f'K1_skipb{r}:')
        A('s_mov_b64 exec, s[44:45]')
        A(f's_add_u32 s3, s3, {CPR*G1P*CELL}')
    A('s_endpgm')
    A('K1_wprep:')
    A('v_lshrrev_b32 v1, 6, v0')
    A('v_and_b32 v2, 63, v0')
    A('v_readfirstlane_b32 s3, v1')
    A(f's_sub_u32 s20, s2, {G1}')
    A(f's_mul_i32 s20, s20, {K1_THREADS//64}')
    A('s_add_u32 s20, s20, s3')
    A('s_waitcnt lgkmcnt(0)')
    srd(A, 36, 18, WS_USED)
    srd(A, 24, 14, 256*128*2)
    srd(A, 28, 12, 16*640*2)
    A('v_lshlrev_b32 v3, 4, v2')
    A('s_cmp_ge_u32 s20, 160')
    A('s_cbranch_scc1 K1_wrad')
    A('s_mul_i32 s21, s20, 3277')
    A('s_lshr_b32 s21, s21, 16')
    A('s_mul_i32 s22, s21, 20')
    A('s_sub_u32 s22, s20, s22')
    A('s_cmp_lt_u32 s22, 8')
    A('s_cbranch_scc1 K1_w0')
    srd(A, 24, 16, 384*128*2)
    A('s_sub_u32 s22, s22, 8')
    A('K1_w0:')
    A('s_lshr_b32 s23, s22, 1')
    A('s_lshl_b32 s23, s23, 6')
    A('s_and_b32 s40, s22, 1')
    A('s_lshl_b32 s40, s40, 4')
    A('s_add_u32 s23, s23, s40')
    A('s_lshl_b32 s23, s23, 8')
    A('s_lshl_b32 s40, s21, 5')
    A('s_add_u32 s23, s23, s40')
    A('s_add_u32 s41, s23, 8192')
    A('v_lshrrev_b32 v4, 4, v2')
    A('v_lshlrev_b32 v4, 10, v4')
    A('v_and_b32 v5, 15, v2')
    A('v_lshl_add_u32 v4, v5, 1, v4')
    for j in range(4):
        A(f'buffer_load_ushort v{8+j}, v4, s[24:27], s23 offen offset:{j*256}')
        A(f'buffer_load_ushort v{12+j}, v4, s[24:27], s41 offen offset:{j*256}')
    A('s_lshl_b32 s40, s20, 10')
    A(f's_add_u32 s40, s40, {WS_WSI}')
    A('s_waitcnt vmcnt(0)')
    for j in range(4):
        A(f'v_lshl_or_b32 v{8+j}, v{12+j}, 16, v{8+j}')
    A('buffer_store_dwordx4 v[8:11], v3, s[36:39], s40 offen')
    A('s_endpgm')
    A('K1_wrad:')
    A('s_sub_u32 s20, s20, 160')
    A('s_cmp_ge_u32 s20, 20')
    A('s_cselect_b32 s21, 1, 0')
    A('s_mul_i32 s22, s21, 20')
    A('s_sub_u32 s22, s20, s22')
    A('s_lshr_b32 s23, s22, 2')
    A('s_lshl_b32 s23, s23, 8')
    A('s_lshl_b32 s40, s21, 7')
    A('s_add_u32 s23, s23, s40')
    A('s_bfe_u32 s40, s22, 0x10001')
    A('s_lshl_b32 s40, s40, 6')
    A('s_add_u32 s23, s23, s40')
    A('s_and_b32 s40, s22, 1')
    A('s_mul_i32 s40, s40, 8*1280')
    A('s_add_u32 s23, s23, s40')
    A('v_lshrrev_b32 v4, 5, v2')
    A('v_mul_u32_u24 v4, 5120, v4')
    A('v_and_b32 v5, 31, v2')
    A('v_lshl_add_u32 v4, v5, 1, v4')
    for j in range(4):
        A(f'buffer_load_ushort v{8+j}, v4, s[28:31], s23 offen offset:{j*1280}')
    A('s_lshl_b32 s40, s20, 10')
    A(f's_add_u32 s40, s40, {WS_WRAD}')
    A('s_waitcnt vmcnt(0)')
    for j in range(4):
        A(f'v_lshlrev_b32 v{8+j}, 16, v{8+j}')
    A('buffer_store_dwordx4 v[8:11], v3, s[36:39], s40 offen')
    A('K1_end:')
    A('s_endpgm')
    return dict(name=name, vgpr=88, sgpr=48, lds=NB*CELL+1024+256)
```

```python
from asmlib import *
from common import *

RING = 0
WR1 = 65536
CNT = WR1 + 20480
TAB = CNT + 256
DUM = TAB + 384
RAW = DUM + 128
LDS_TOTAL = 163840
RAWCAP = LDS_TOTAL - RAW
PROW = 1536
PAT = 0x7f007f00
assert RAW % 128 == 0

class R: pass

def alloc():
    r = R()
    v = Alloc(0, 256)
    r.ACC = v.get('acc', 64)
    r.AC = v.get('acache', 32)
    r.W = v.get('w', 80)
    r.BF = v.get('bf', 8)
    r.CAR = v.get('car', 8)
    r.ST = v.get('stash', 30)
    r.V = v.get('V', 8)
    r.Y = v.get('Y', 4)
    r.B0 = v.get('b0'); r.B1 = v.get('b1')
    r.LO = v.get('laneoff')
    r.EAL = v.get('eal'); r.YL = v.get('yl'); r.SL = v.get('sl'); r.PL = v.get('pl')
    r.EAB = v.get('eab'); r.YB = v.get('yb')
    r.PA = v.get('pa')
    r.T = v.get('t', 4)
    r.EL = v.get('el'); r.EO = v.get('eo')
    r.LANE = v.get('lane')
    r.nv = v.p
    s = Alloc(4, 102)
    r.sX = s.get('X', 4, 4); r.sEA = s.get('EA', 4, 4); r.sWS = s.get('WS', 4, 4); r.sOUT = s.get('OUT', 4, 4)
    r.sP = s.get('ptr', 8, 4)
    r.sWave = s.get('wave'); r.sRing = s.get('ring')
    r.sM = s.get('meta', 5)
    r.sC = s.get('C', 4)
    r.sPS = s.get('PS', 4)
    r.sA = s.get('A', 4)
    r.sS = s.get('S'); r.sSn = s.get('Sn'); r.sRn = s.get('Rn'); r.sRc = s.get('Rc')
    r.sIt = s.get('it'); r.sIdx = s.get('idx')
    r.sYm = s.get('ym', 2, 2)
    r.sE0 = s.get('e0', 2, 2); r.sE1 = s.get('e1', 2, 2); r.sEm0 = s.get('em0'); r.sEm1 = s.get('em1')
    r.sT = s.get('t', 8, 2)
    r.sTab = s.get('tab', 2, 2)
    r.sEx = s.get('ex', 16, 2)
    r.sBk = s.get('bucket')
    r.ns = s.p
    return r

def acc(r, t, blk, i=0): return r.ACC + (blk * 2 + t) * 16 + i
def wreg(r, k, blk, i): return r.W + k * 16 + blk * 8 + i
def ac(r, s, t): return r.AC + s * 8 + t * 4

def lbuild(r, s):
    o = []
    E_ = ac(r, s, 1); A0 = ac(r, s, 0); Y = r.Y + s
    U = [(r.CAR, r.CAR + 1), (r.CAR + 2, r.CAR + 3)]; P = r.CAR + 4
    def unp(j):
        u = U[j & 1]
        o.append(f'v_lshlrev_b32 v{u[0]}, 16, v{E_+j}')
        o.append(f'v_and_b32 v{u[1]}, 0xffff0000, v{E_+j}')
    dpp = lambda d, k, u: f'v_mul_f32_dpp v{d}, v{Y}, v{u} row_newbcast:{k} row_mask:0xf bank_mask:0xf'
    unp(0); unp(1)
    for j in range(4):
        u = U[j & 1]
        o.append(dpp(P, 2*j, u[0])); o.append(dpp(P+1, 2*j+1, u[1]))
        o.append(dpp(P+2, 8+2*j, u[0])); o.append(dpp(P+3, 9+2*j, u[1]))
        if j + 2 < 4: unp(j + 2)
        o.append(f'v_cvt_pk_bf16_f32 v{A0+j}, v{P}, v{P+1}')
        o.append(f'v_cvt_pk_bf16_f32 v{E_+j}, v{P+2}, v{P+3}')
    return o

def chain(dst, a0, w0, neg=False, init=True):
    o = []
    for i in range(8):
        if i == 0 and init:
            o.append(f'v_mul_f32_e64 v{dst}, v{a0}, -v{w0}' if neg else f'v_mul_f32 v{dst}, v{a0}, v{w0}')
        elif neg:
            o.append(f'v_fma_f32 v{dst}, v{a0+i}, -v{w0+i}, v{dst}')
        else:
            o.append(f'v_fmac_f32 v{dst}, v{a0+i}, v{w0+i}')
    return o

def epilogue(A, r, b, phase):
    car = lambda j, blk: r.CAR + j * 2 + blk
    pairs = []
    for blk in range(2):
        a = lambda aa: acc(r, aa >> 1, blk, (aa & 1) * 8)
        w = lambda k: wreg(r, k, blk, 0)
        if b == 0:
            for o in chain(a(0), a(0), w(0)): A(o)
            for aa in (1, 2, 3):
                for o in chain(a(aa), a(aa), w(2)): A(o)
        elif b == 1:
            for o in chain(car(0, blk), a(0), w(3)): A(o)
            for o in chain(car(1, blk), a(1), w(1)): A(o)
            for o in chain(car(2, blk), a(2), w(4), neg=True): A(o)
            for o in chain(car(3, blk), a(3), w(4)): A(o)
        elif b == 2:
            for o in chain(a(0), a(0), w(3)): A(o)
            for o in chain(car(2, blk), a(1), w(4), init=False): A(o)
            for o in chain(car(1, blk), a(2), w(1), init=False): A(o)
            for o in chain(a(3), a(3), w(4), neg=True): A(o)
        else:
            for o in chain(a(0), a(0), w(3)): A(o)
            for o in chain(car(3, blk), a(1), w(4), neg=True, init=False): A(o)
            for o in chain(car(0, blk), a(2), w(4), init=False): A(o)
            for o in chain(car(1, blk), a(3), w(1), init=False): A(o)
    a = lambda aa, blk: acc(r, aa >> 1, blk, (aa & 1) * 8)
    if b == 0:
        pairs = [(0, lambda k: a(0, k), lambda k: a(1, k)), (1, lambda k: a(2, k), lambda k: a(3, k))]
    elif b == 1:
        pairs = []
    elif b == 2:
        pairs = [(2, lambda k: car(0, k), lambda k: a(0, k))]
    else:
        pairs = [(3, lambda k: a(0, k), lambda k: car(2, k)), (5, lambda k: car(3, k), lambda k: a(1, k)),
                 (4, lambda k: car(1, k), lambda k: car(0, k))]
    if not pairs: return
    A('s_nop 0')
    if len(pairs) == 1 or b == 3: A('s_nop 0')
    for blk in range(2):
        for (wi, fa, fb) in pairs:
            A(f'v_permlane32_swap_b32 v{fa(blk)}, v{fb(blk)}')
    for blk in range(2):
        for (wi, fa, fb) in pairs:
            A(f'v_add_f32 v{fb(blk)}, v{fa(blk)}, v{fb(blk)}')
    if b == 2:
        for blk in range(2):
            A(f'v_mov_b32 v{car(0, blk)}, v{a(3, blk)}')
    if phase == 0:
        A(f's_set_gpr_idx_on s{r.sIdx}, gpr_idx(DST)')
        A('s_nop 0')
        for (wi, fa, fb) in pairs:
            A(f'v_cvt_pk_bf16_f32 v{r.ST+wi}, v{fb(0)}, v{fb(1)}')
        A('s_set_gpr_idx_off')
    else:
        for (wi, fa, fb) in pairs:
            A(f'v_cvt_pk_bf16_f32 v{fb(0)}, v{fb(0)}, v{fb(1)}')
        for (wi, fa, fb) in pairs:
            A(f'ds_write_b32 v{r.PA}, v{fb(0)} offset:{wi*256}')

def dma(A, r, slot, vreg, soff):
    for q in range(2):
        A(f's_add_u32 m0, s{r.sRing}, {slot*2048+q*1024}')
        A('s_nop 0')
        A(f'buffer_load_dwordx4 v{vreg+q}, s[{r.sX}:{r.sX+3}], s{soff} offen lds')

def bread(A, r, slot, blk):
    b = r.B0 if blk == 0 else r.B1
    for j in range(2):
        A(f'ds_read_b64_tr_b16 v[{r.BF+blk*4+2*j}:{r.BF+blk*4+2*j+1}], v{b} offset:{slot*2048+j*512}')

def earead(A, r, s, S):
    for j in range(2):
        A(f'ds_read_b64_tr_b16 v[{ac(r,s,1)+2*j}:{ac(r,s,1)+2*j+1}], v{r.EAB} offset:{s*512+j*128}')
    A(f's_mov_b64 exec, s[{r.sYm}:{r.sYm+1}]')
    A(f'ds_read_u16_d16_hi v{r.Y+s}, v{r.YB} offset:{s*128}')
    A('s_mov_b64 exec, -1')

def srcread(A, r, j):
    A(f'v_add_u32 v{r.T}, s{r.sA+j}, v{r.SL}')
    A(f'ds_read_u16 v{r.V+2*j}, v{r.T}')
    A(f'ds_read_u16 v{r.V+2*j+1}, v{r.T} offset:64')

def srcfix(A, r, j):
    for q in range(2):
        A(f'v_lshl_add_u32 v{r.V+2*j+q}, v{r.V+2*j+q}, 10, v{r.LO}')

def mfma(r, t, blk, s, first):
    d = acc(r, t, blk)
    c = '0' if first else f'v[{d}:{d+15}]'
    return f'v_mfma_f32_32x32x16_bf16 v[{d}:{d+15}], v[{ac(r,s,t)}:{ac(r,s,t)+3}], v[{r.BF+blk*4}:{r.BF+blk*4+3}], {c}'

class LG:
    def __init__(self, A): self.A = A; self.q = []
    def add(self, tag, n=1): self.q += [tag] * n
    def wait(self, tag):
        idx = [i for i, t in enumerate(self.q) if t == tag]
        if not idx: return
        n = len(self.q) - 1 - idx[-1]
        self.A(f's_waitcnt lgkmcnt({min(n, 15)})')
        self.q = self.q[idx[-1] + 1:]

def item(A, r, S, phase, opt):
    A(f'ITEM_{phase}_{S}:')
    lg = LG(A)
    lg.add('B0', 2); lg.add('B1', 2); lg.add('E0', 3)
    n = 4 * S
    for s in range(1, S):
        earead(A, r, s, S); lg.add(f'E{s}', 3)
    vfree = {j: (3*S + j - 4 if (j < S and 3*S + j >= 4) else -1) for j in range(4)}
    for j in range(4):
        if vfree[j] < 0:
            srcread(A, r, j); lg.add(f'V{j}', 2)
    if phase == 0:
        A(f'v_add_u32 v{r.T+1}, s{r.sRn}, v{r.EL}')
        A(f'ds_read_b32 v{r.T+2}, v{r.T+1}')
        A(f'ds_read_b32 v{r.T+3}, v{r.T+1} offset:1024')
        lg.add('X', 2)
    else:
        A(f'v_xor_b32 v{r.PA}, s{r.sT+7}, v{r.PL}')
        A(f'v_add_u32 v{r.PA}, s{r.sRc}, v{r.PA}')
    lg.wait('E0')
    for o in lbuild(r, 0): A(o)
    A('s_nop 0')
    extra = 0
    for c in range(n):
        b, s = divmod(c, S)
        fill = []
        if b == 0 and s + 1 < S:
            lg.wait(f'E{s+1}')
            fill = lbuild(r, s + 1)
        f = [fill[0:8], fill[8:16], fill[16:24], fill[24:32]]
        lg.wait('B0')
        A(mfma(r, 0, 0, s, s == 0))
        for o in f[0]: A(o)
        A(mfma(r, 1, 0, s, s == 0))
        for o in f[1]: A(o)
        cn = c + 4
        if cn >= n:
            j = cn - n
            lg.wait(f'V{j}')
            srcfix(A, r, j)
        lg.wait('B1')
        if cn < n:
            bn, sn = divmod(cn, S)
            dma(A, r, c % 4, r.V + 2*sn, r.sC + bn)
        else:
            dma(A, r, c % 4, r.V + 2*(cn - n), r.sPS + (cn - n))
        if phase == 0 and c == 0:
            lg.wait('X')
            for q in range(2):
                A(f'v_lshl_add_u32 v{r.T+2+q}, v{r.T+2+q}, 5, v{r.EO}')
            for q, (ex, em) in enumerate(((r.sE0, r.sEm0), (r.sE1, r.sEm1))):
                A(f's_mov_b32 m0, s{em}')
                A(f's_mov_b64 exec, s[{ex}:{ex+1}]')
                A(f'buffer_load_dwordx4 v{r.T+2+q}, s[{r.sEA}:{r.sEA+3}], 0 offen {opt.get("ea_aux","")} lds')
            A('s_mov_b64 exec, -1')
        for j in range(4):
            if vfree[j] == c:
                srcread(A, r, j); lg.add(f'V{j}', 2)
        vm = 8 if (phase == 0 and c <= 3) else 6
        A(f's_waitcnt vmcnt({vm})')
        bread(A, r, (c + 1) % 4, 0); lg.add('B0', 2)
        A(mfma(r, 0, 1, s, s == 0))
        for o in f[2]: A(o)
        A(mfma(r, 1, 1, s, s == 0))
        bread(A, r, (c + 1) % 4, 1); lg.add('B1', 2)
        for o in f[3]: A(o)
        if fill: A('s_nop 0')
        if c == n - 1:
            if phase == 0 and S == 1:
                A('s_waitcnt vmcnt(6)')
            A(f'v_add_u32 v{r.EAB}, s{r.sRn}, v{r.EAL}')
            A(f'v_add_u32 v{r.YB}, s{r.sA}, v{r.YL}')
            earead(A, r, 0, S); lg.add('E0', 3)
        if s == S - 1:
            epilogue(A, r, b, phase)
            if phase == 1:
                lg.add('P', {0: 2, 1: 0, 2: 1, 3: 3}[b])
    A(f's_branch NEXT_{phase}')

def nextinfo(A, r, phase_next_reg=None):
    t = r.sT
    A(f's_and_b32 s{r.sRn}, s{r.sM+1}, 0x3ffff')
    A(f's_bfe_u32 s{r.sSn}, s{r.sM+1}, 0x30012')
    A(f's_lshl_b32 s{t}, s{r.sSn}, 9')
    A(f's_add_u32 s{r.sA}, s{r.sRn}, s{t}')
    A(f's_mul_i32 s{t}, s{r.sSn}, 12')
    A(f's_lshr_b64 s[{t+2}:{t+3}], s[{r.sTab}:{r.sTab+1}], s{t}')
    A(f's_mov_b32 s{r.sPS}, s{t+6}')
    for j in range(1, 4):
        A(f's_bfe_u32 s{t}, s{t+2}, {(2 << 16) | ((j-1)*4)}')
        A(f's_lshl_b32 s{t}, s{t}, 7')
        A(f's_add_u32 s{r.sA+j}, s{r.sA}, s{t}')
        A(f's_bfe_u32 s{t}, s{t+2}, {(2 << 16) | ((j-1)*4+2)}')
        A(f's_lshl_b32 s{t}, s{t}, 8')
        A(f's_add_u32 s{r.sPS+j}, s{t}, s{t+6}')

def table64():
    tab = 0
    for S in range(1, 5):
        f = 0
        for j in range(1, 4):
            f |= ((j % S) | ((j // S) << 2)) << ((j - 1) * 4)
        tab |= f << (12 * S)
    return tab

def eamasks(A, r):
    A(f's_mov_b32 s{r.sE0}, -1')
    A(f's_cmp_ge_u32 s{r.sSn}, 2')
    A(f's_cselect_b32 s{r.sE0+1}, -1, 0')
    A(f's_mov_b32 s{r.sEm0}, s{r.sRn}')
    A(f's_add_u32 s{r.sEm1}, s{r.sRn}, 1024')
    A(f's_cmp_ge_u32 s{r.sSn}, 3')
    A(f's_cselect_b32 s{r.sE1}, -1, 1')
    A(f's_cselect_b32 s{r.sEm1}, s{r.sEm1}, {DUM}')
    A(f's_cmp_ge_u32 s{r.sSn}, 4')
    A(f's_cselect_b32 s{r.sE1+1}, -1, 0')

def dispatch(A, r, phase):
    for S in (2, 3, 4):
        A(f's_cmp_eq_u32 s{r.sS}, {S}')
        A(f's_cbranch_scc1 ITEM_{phase}_{S}')
    A(f's_branch ITEM_{phase}_1')

def rotate(A, r):
    t = r.sT
    A(f's_mov_b32 s{t}, s{r.sM}')
    for i in range(4): A(f's_mov_b32 s{r.sM+i}, s{r.sM+i+1}')
    A(f's_mov_b32 s{r.sM+4}, s{t}')
    A(f's_mov_b32 s{r.sS}, s{r.sSn}')
    A(f's_mov_b32 s{r.sRc}, s{r.sRn}')

def psigma(A, r, dst, meta):
    t = r.sT
    A(f's_bfe_u32 s{dst}, s{meta}, 0x40015')
    A(f's_bfe_u32 s{t}, s{meta}, 0x10007')
    A(f's_lshl_b32 s{t}, s{t}, 3')
    A(f's_xor_b32 s{dst}, s{dst}, s{t}')
    A(f's_lshl_b32 s{dst}, s{dst}, 4')

def stamp(A, r, opt, k):
    if not opt.get('stamps'): return
    A(f's_memrealtime s[{r.sEx}:{r.sEx+1}]') if False else None

def gen_k2(A, opt):
    r = alloc()
    name = K2_NAME
    t = r.sT
    A(f'.globl {name}\n.p2align 8\n.type {name},@function\n{name}:')
    A(f's_cmp_ge_u32 s2, {NB}')
    A('s_cbranch_scc1 K2_end')
    A(f's_load_dwordx2 s[{r.sP}:{r.sP+1}], s[0:1], 0')
    A(f's_load_dwordx2 s[{r.sP+2}:{r.sP+3}], s[0:1], 16')
    A(f's_load_dwordx2 s[{r.sP+4}:{r.sP+5}], s[0:1], 72')
    A(f's_load_dwordx2 s[{r.sP+6}:{r.sP+7}], s[0:1], 88')
    A(f's_mov_b32 s{r.sBk}, s2')
    L = r.LANE
    TID = 1; W0 = 8; YS = 16; RK = 32; INF = 40; X0 = 48
    A(f'v_lshrrev_b32 v2, 6, v0')
    A(f'v_and_b32 v{L}, 63, v0')
    A(f'v_readfirstlane_b32 s{r.sWave}, v2')
    A(f'v_lshrrev_b32 v2, 5, v{L}')
    A(f'v_mul_u32_u24 v2, {CELL}, v2')
    A(f'v_and_b32 v3, 31, v{L}')
    A(f'v_lshl_add_u32 v{X0}, v3, 2, v2')
    A(f'v_lshl_add_u32 v{X0+1}, v3, 3, v2')
    A(f'v_lshlrev_b32 v{X0+2}, 4, v{L}')
    A(f's_mul_i32 s{t}, s2, {G1P*CELL}')
    A(f's_mul_i32 s{t+1}, s{r.sWave}, {16*CELL}')
    A(f's_add_u32 s{t}, s{t}, s{t+1}')
    A(f's_add_u32 s{t+1}, s{t}, {4*2*CELL}')
    A(f's_lshl_b32 s{r.sRing}, s{r.sWave}, 13')
    A('s_waitcnt lgkmcnt(0)')
    srd(A, r.sWS, r.sP+6, WS_USED)
    for i in range(8):
        so = t if i < 4 else t + 1
        A(f'buffer_load_dword v{W0+i}, v{X0}, s[{r.sWS}:{r.sWS+3}], s{so} offen offset:{(i%4)*2*CELL}')
        A(f'buffer_load_dwordx2 v[{YS+2*i}:{YS+2*i+1}], v{X0+1}, s[{r.sWS}:{r.sWS+3}], s{so} offen offset:{(i%4)*2*CELL+128}')
    srd(A, r.sX, r.sP, N*1024)
    srd(A, r.sEA, r.sP+2, E*32)
    srd(A, r.sOUT, r.sP+4, N*1024)
    A(f's_mul_i32 s{t+2}, s{r.sWave}, 5120')
    A(f's_add_u32 s{t+3}, s{t+2}, {WS_WRAD}')
    A(f's_cmp_ge_u32 s{r.sWave}, 4')
    A(f's_cselect_b32 s{t+4}, {WR1-20480}, 0')
    A(f's_add_u32 s{t+2}, s{t+2}, s{t+4}')
    for i in range(5):
        A(f's_add_u32 m0, s{t+2}, {i*1024}')
        A(f's_add_u32 s{t+4}, s{t+3}, {i*1024}')
        A(f'buffer_load_dwordx4 v{X0+2}, s[{r.sWS}:{r.sWS+3}], s{t+4} offen lds')
    npf = opt.get('npf', 0)
    if npf:
        A(f's_lshr_b32 s{t+2}, s2, 3')
        A(f's_mul_i32 s{t+2}, s{t+2}, {npf*8}')
        A(f's_mul_i32 s{t+3}, s{r.sWave}, {npf}')
        A(f's_add_u32 s{t+2}, s{t+2}, s{t+3}')
        A(f's_lshl_b32 s{t+2}, s{t+2}, 14')
        A(f'v_lshlrev_b32 v2, 8, v{L}')
        for i in range(npf):
            A(f'buffer_load_dword v{X0+4+i}, v2, s[{r.sX}:{r.sX+3}], s{t+2} offen')
            if i + 1 < npf: A(f's_add_u32 s{t+2}, s{t+2}, 16384')
    for i in range(4): A(f'v_mov_b32 v{4+i}, {PAT}')
    A(f'v_lshlrev_b32 v2, 4, v0')
    A(f'v_add_u32 v2, {RAW}, v2')
    nfull = RAWCAP // 8192
    for i in range(nfull):
        if i == 8: A('v_add_u32 v2, 0x10000, v2')
        A(f'ds_write_b128 v2, v[4:7] offset:{(i % 8)*8192}')
    rem = RAWCAP - nfull * 8192
    if rem:
        A(f'v_lshlrev_b32 v2, 4, v0')
        A(f'v_min_u32 v2, {rem-16}, v2')
        A(f'v_add_u32 v2, {RAW + nfull*8192}, v2')
        A('ds_write_b128 v2, v[4:7]')
    A(f'v_lshlrev_b32 v{r.PL}, 2, v{L}')
    A(f'v_mov_b32 v3, 0')
    A(f'v_add_u32 v2, {CNT}, v{r.PL}')
    A('ds_write_b32 v2, v3')
    A(f'v_lshrrev_b32 v2, 5, v{L}')
    A(f'v_bfe_u32 v3, v{L}, 2, 2')
    A(f'v_and_b32 v4, 3, v{L}')
    A(f'v_bfe_u32 v5, v{L}, 4, 1')
    A(f'v_lshlrev_b32 v6, 10, v2')
    A(f'v_lshl_add_u32 v6, v3, 7, v6')
    A(f'v_lshl_add_u32 v6, v5, 5, v6')
    A(f'v_lshl_add_u32 v6, v4, 3, v6')
    A(f'v_lshrrev_b32 v7, 1, v3')
    A(f'v_lshl_add_u32 v6, v7, 6, v6')
    A(f'v_add_u32 v{r.B0}, s{r.sRing}, v6')
    A(f'v_xor_b32 v{r.B1}, 64, v{r.B0}')
    A(f'v_lshlrev_b32 v6, 8, v2')
    A(f'v_lshl_add_u32 v6, v3, 5, v6')
    A(f'v_lshl_add_u32 v{r.EAL}, v4, 3, v6')
    A(f'v_and_b32 v6, 7, v{L}')
    A(f'v_lshl_add_u32 v6, v2, 3, v6')
    A(f'v_lshlrev_b32 v6, 3, v6')
    A(f'v_bfe_u32 v7, v{L}, 3, 1')
    A(f'v_add_u32 v5, 1, v5')
    A(f'v_mul_u32_u24 v7, v7, v5')
    A(f'v_lshl_add_u32 v{r.YL}, v7, 1, v6')
    A(f'v_and_b32 v6, 0x38, v{L}')
    A(f'v_add_u32 v{r.SL}, 6, v6')
    A(f'v_lshrrev_b32 v6, 2, v{L}')
    A(f'v_lshrrev_b32 v7, 4, v{L}')
    A(f'v_xor_b32 v6, v6, v7')
    A(f'v_and_b32 v6, 1, v6')
    A(f'v_lshlrev_b32 v6, 6, v6')
    A(f'v_lshl_add_u32 v{r.LO}, v4, 4, v6')
    A(f'v_lshrrev_b32 v6, 1, v{L}')
    A(f'v_lshlrev_b32 v{r.EL}, 5, v6')
    A(f'v_and_b32 v6, 1, v{L}')
    A(f'v_lshlrev_b32 v{r.EO}, 4, v6')
    for i in range(4): A(f'v_mov_b32 v{r.Y+i}, 1.0')
    A(f's_mov_b32 s{r.sYm}, 0xffffff00')
    A(f's_mov_b32 s{r.sYm+1}, 0xffffff00')
    tab = table64()
    A(f's_mov_b32 s{r.sTab}, {tab & 0xffffffff}')
    A(f's_mov_b32 s{r.sTab+1}, {tab >> 32}')
    A(f'v_mov_b32 v3, 1')
    A(f's_mov_b32 s{t+5}, 0')
    A('s_waitcnt lgkmcnt(0)')
    A('s_barrier')
    for i in range(8):
        A(f's_waitcnt vmcnt({2*(7-i)+1+5+npf})')
        A(f'v_readlane_b32 s{t}, v{W0+i}, 0')
        A(f'v_readlane_b32 s{t+1}, v{W0+i}, 32')
        A(f'v_bfe_u32 v{INF+i}, v{W0+i}, 19, 6')
        A(f'v_lshlrev_b32 v{INF+i}, 2, v{INF+i}')
        A(f's_lshr_b32 s{t}, s{t}, 25')
        A(f's_lshr_b32 s{t+1}, s{t+1}, 25')
        if i >= 6:
            A(f's_cmp_eq_u32 s{r.sWave}, 7')
            if i == 7: A(f's_cselect_b32 s{t}, 0, s{t}')
            A(f's_cselect_b32 s{t+1}, 0, s{t+1}')
        A(f's_max_u32 s{t+5}, s{t+5}, s{t}')
        A(f's_max_u32 s{t+5}, s{t+5}, s{t+1}')
        A(f's_min_u32 s{t}, s{t}, 32')
        A(f's_min_u32 s{t+1}, s{t+1}, 32')
        A(f's_bfm_b64 s[{t+2}:{t+3}], s{t}, 0')
        A(f's_mov_b32 s{r.sEx+2*i}, s{t+2}')
        A(f's_bfm_b64 s[{t+2}:{t+3}], s{t+1}, 0')
        A(f's_mov_b32 s{r.sEx+2*i+1}, s{t+2}')
        A(f'v_add_u32 v2, {CNT}, v{INF+i}')
        A(f's_mov_b64 exec, s[{r.sEx+2*i}:{r.sEx+2*i+1}]')
        A(f'ds_add_rtn_u32 v{RK+i}, v2, v3')
        A('s_mov_b64 exec, -1')
    A(f's_cmp_gt_u32 s{t+5}, {CAP}')
    A(f's_cselect_b32 s{t}, 1000, 0')
    A(f'v_mov_b32 v2, {CNT+63*4}')
    A(f'v_mov_b32 v4, s{t}')
    A('ds_max_u32 v2, v4')
    A(f's_waitcnt vmcnt({npf}) lgkmcnt(0)')
    A('s_barrier')
    A(f'v_add_u32 v2, {CNT}, v{r.PL}')
    A('ds_read_b32 v4, v2')
    A(f'v_lshlrev_b32 v2, 4, v{L}')
    for i in range(20):
        A(f'ds_read_b128 v[{r.W+4*i}:{r.W+4*i+3}], v2 offset:{RING+i*1024}')
    A('s_waitcnt lgkmcnt(15)')
    A(f'v_cmp_lt_u32 vcc, 64, v4')
    A(f'v_add_u32 v5, 15, v4')
    A(f'v_lshrrev_b32 v5, 4, v5')
    A(f'v_max_u32 v5, 1, v5')
    A(f'v_min_u32 v5, 4, v5')
    A(f's_cmp_lg_u64 vcc, 0')
    A('s_cbranch_scc1 SLOW')
    A(f'v_mul_u32_u24 v6, 640, v5')
    A(f'v_max_u32 v6, {PROW}, v6')
    A(f'v_cmp_gt_u32 vcc, {NPB}, v{L}')
    A('s_nop 1')
    A(f'v_cndmask_b32 v6, 0, v6, vcc')
    A(f'v_cndmask_b32 v5, 0, v5, vcc')
    A(f'v_mov_b32 v7, v6')
    for sh in (1, 2, 4, 8):
        A('s_nop 1')
        A(f'v_add_u32_dpp v7, v7, v7 row_shr:{sh} row_mask:0xf bank_mask:0xf')
    A('s_nop 1')
    A('v_add_u32_dpp v7, v7, v7 row_bcast:15 row_mask:0xa bank_mask:0xf')
    A('s_nop 1')
    A('v_add_u32_dpp v7, v7, v7 row_bcast:31 row_mask:0xc bank_mask:0xf')
    A('s_nop 0')
    A(f'v_readlane_b32 s{t}, v7, 63')
    A(f'v_sub_u32 v7, v7, v6')
    A(f'v_add_u32 v7, {RAW}, v7')
    A(f's_cmp_gt_u32 s{t}, {RAWCAP}')
    A('s_cbranch_scc1 SLOW')
    A(f'v_lshl_or_b32 v6, v5, 18, v7')
    A(f'v_lshl_or_b32 v6, v{L}, 21, v6')
    for i in range(8):
        A(f'ds_bpermute_b32 v{INF+i}, v{INF+i}, v6')
    A(f's_mov_b32 s{t+4}, 0')
    A(f'v_mov_b32 v{X0}, 63')
    for S in (4, 3, 2, 1):
        A(f'v_cmp_eq_u32 vcc, {S}, v5')
        A('s_nop 1')
        A(f'v_mbcnt_lo_u32_b32 v2, vcc_lo, 0')
        A(f'v_mbcnt_hi_u32_b32 v2, vcc_hi, v2')
        A(f'v_add_u32 v2, s{t+4}, v2')
        A(f'v_cndmask_b32 v{X0}, v{X0}, v2, vcc')
        A(f's_bcnt1_i32_b64 s{t+5}, vcc')
        A(f's_add_u32 s{t+4}, s{t+4}, s{t+5}')
    A(f'v_lshrrev_b32 v2, 3, v{X0}')
    A(f'v_and_b32 v3, 1, v2')
    A(f'v_mul_u32_u24 v3, 7, v3')
    A(f'v_xor_b32 v{X0}, v{X0}, v3')
    for rr in range(5):
        A(f's_add_u32 s{t}, s{r.sWave}, {rr*8}')
        A(f'v_cmp_eq_u32 vcc, s{t}, v{X0}')
        A(f's_ff1_i32_b64 s{t+1}, vcc')
        A(f'v_readlane_b32 s{r.sM+rr}, v6, s{t+1}')
    A(f'v_and_b32 v3, 7, v{X0}')
    A(f'v_lshlrev_b32 v3, 13, v3')
    A(f'v_mul_u32_u24 v2, {PROW}, v2')
    A(f'v_add_u32 v2, v2, v3')
    A(f'v_mov_b32 v3, v7')
    A(f'v_lshlrev_b32 v4, 3, v{L}')
    A(f'v_add_u32 v4, {TAB}, v4')
    A(f's_mov_b32 exec_hi, 0xff')
    A('ds_write_b64 v4, v[2:3]')
    A(f's_mov_b32 exec_hi, -1')
    A('s_waitcnt lgkmcnt(0)')
    for i in range(8):
        A(f'v_and_b32 v2, 0x3ffff, v{INF+i}')
        A(f'v_bfe_u32 v3, v{INF+i}, 18, 3')
        A(f'v_lshl_add_u32 v3, v3, 9, v2')
        A(f'v_lshl_add_u32 v2, v{RK+i}, 5, v2')
        A(f'v_lshl_add_u32 v3, v{RK+i}, 3, v3')
        A(f'v_and_b32 v{W0+i}, 0x7ffff, v{W0+i}')
        A(f's_mov_b64 exec, s[{r.sEx+2*i}:{r.sEx+2*i+1}]')
        A(f'ds_write_b32 v2, v{W0+i}')
        A(f'ds_write_b64 v3, v[{YS+2*i}:{YS+2*i+1}]')
        A('s_mov_b64 exec, -1')
    A(f's_mov_b32 s{t+6}, 0')
    A(f's_mov_b32 s{t+7}, s{r.sM+1}')
    A(f's_mov_b32 s{r.sM+1}, s{r.sM}')
    nextinfo(A, r)
    eamasks(A, r)
    A(f's_mov_b32 s{r.sM+1}, s{t+7}')
    for b in range(4): A(f's_mov_b32 s{r.sC+b}, {b*256}')
    A('s_waitcnt lgkmcnt(0)')
    A('s_barrier')
    for j in range(4): srcread(A, r, j)
    A(f'v_add_u32 v{r.T+1}, s{r.sRn}, v{r.EL}')
    A(f'ds_read_b32 v{r.T+2}, v{r.T+1}')
    A(f'ds_read_b32 v{r.T+3}, v{r.T+1} offset:1024')
    A('s_waitcnt lgkmcnt(0)')
    for q in range(2):
        A(f'v_lshl_add_u32 v{r.T+2+q}, v{r.T+2+q}, 5, v{r.EO}')
    for q, (ex, em) in enumerate(((r.sE0, r.sEm0), (r.sE1, r.sEm1))):
        A(f's_mov_b32 m0, s{em}')
        A(f's_mov_b64 exec, s[{ex}:{ex+1}]')
        A(f'buffer_load_dwordx4 v{r.T+2+q}, s[{r.sEA}:{r.sEA+3}], 0 offen {opt.get("ea_aux","")} lds')
    A('s_mov_b64 exec, -1')
    for j in range(4):
        srcfix(A, r, j)
        dma(A, r, j, r.V + 2*j, r.sPS + j)
    A(f'v_add_u32 v{r.EAB}, s{r.sRn}, v{r.EAL}')
    A(f'v_add_u32 v{r.YB}, s{r.sA}, v{r.YL}')
    A(f's_mov_b32 s{r.sS}, s{r.sSn}')
    A(f's_mov_b32 s{r.sRc}, s{r.sRn}')
    nextinfo(A, r)
    eamasks(A, r)
    A(f's_mov_b32 s{r.sIt}, 0')
    A(f's_mov_b32 s{r.sIdx}, 0')
    A('s_waitcnt vmcnt(6)')
    bread(A, r, 0, 0); bread(A, r, 0, 1)
    earead(A, r, 0, 0)
    dispatch(A, r, 0)
    A('NEXT_0:')
    rotate(A, r)
    A(f's_add_u32 s{r.sIt}, s{r.sIt}, 1')
    A(f's_add_u32 s{r.sIdx}, s{r.sIdx}, 6')
    A(f's_cmp_eq_u32 s{r.sIt}, 5')
    A('s_cbranch_scc1 TO_PHASE1')
    A(f's_cmp_eq_u32 s{r.sIt}, 4')
    A(f's_cselect_b32 s{t+6}, 128, 0')
    nextinfo(A, r)
    eamasks(A, r)
    A(f's_cmp_eq_u32 s{r.sIt}, 4')
    A('s_cbranch_scc0 NEXT_0_go')
    for ex, em in ((r.sE0, r.sEm0), (r.sE1, r.sEm1)):
        A(f's_mov_b64 s[{ex}:{ex+1}], 1')
        A(f's_mov_b32 s{em}, {DUM}')
    A('NEXT_0_go:')
    dispatch(A, r, 0)
    A('TO_PHASE1:')
    A(f'v_lshlrev_b32 v{r.T}, 4, v{L}')
    A(f'v_add_u32 v{r.T}, {WR1}, v{r.T}')
    for i in range(20):
        A(f'ds_read_b128 v[{r.W+4*i}:{r.W+4*i+3}], v{r.T} offset:{i*1024}')
    for b in range(4): A(f's_mov_b32 s{r.sC+b}, {b*256+128}')
    A(f's_mov_b32 s{r.sIt}, 0')
    A('s_waitcnt lgkmcnt(0)')
    A('s_branch NEXT_1_go')
    A('NEXT_1:')
    rotate(A, r)
    A(f's_add_u32 s{r.sIt}, s{r.sIt}, 1')
    A(f's_cmp_eq_u32 s{r.sIt}, 5')
    A('s_cbranch_scc1 TAIL')
    A('NEXT_1_go:')
    nextinfo(A, r)
    psigma(A, r, t+7, r.sM)
    dispatch(A, r, 1)
    for phase in range(2):
        for S in (2, 3, 4, 1):
            A('.p2align 6')
            item(A, r, S, phase, opt)
    A('.p2align 6')
    A('TAIL:')
    A('s_waitcnt vmcnt(0) lgkmcnt(0)')
    A(f'v_lshlrev_b32 v{r.T}, 4, v{L}')
    A(f's_mul_i32 s{t}, s{r.sWave}, 20480')
    A(f's_add_u32 s{t}, s{t}, {WS_WSI}')
    for i in range(20):
        A(f'buffer_load_dwordx4 v[{r.W+4*i}:{r.W+4*i+3}], v{r.T}, s[{r.sWS}:{r.sWS+3}], s{t} offen offset:{(i%4)*1024}')
        if i % 4 == 3: A(f's_add_u32 s{t}, s{t}, 4096')
    for rr in range(5):
        A(f's_bfe_u32 s{t+1}, s{r.sM+rr}, 0x40015')
        A(f's_lshl_b32 s{t+1}, s{t+1}, 4')
        A(f's_add_u32 s{t+2}, s{r.sRing}, {rr*PROW}')
        A(f'v_xor_b32 v{r.PA}, s{t+1}, v{r.PL}')
        A(f'v_add_u32 v{r.PA}, s{t+2}, v{r.PA}')
        for wi in range(6):
            A(f'ds_write_b32 v{r.PA}, v{r.ST+rr*6+wi} offset:{wi*256}')
    A('GEMM:')
    D = 0; AD = 48; F = 72; NF = 6
    A(f'v_and_b32 v179, 15, v{L}')
    A(f'v_lshrrev_b32 v180, 4, v{L}')
    A(f'v_lshlrev_b32 v182, 3, v179')
    A(f'v_add_u32 v182, {TAB}, v182')
    A(f'v_min_u32 v183, {TAB + (NPB-1-32)*8}, v182')
    A(f'ds_read_b64 v[184:185], v182')
    A(f'ds_read_b64 v[186:187], v182 offset:128')
    A(f'ds_read_b64 v[188:189], v183 offset:256')
    A(f'v_min_u32 v178, {NPB-1-32}, v179')
    A('s_waitcnt lgkmcnt(0)')
    for T in range(3):
        m = 179 if T < 2 else 178
        for ph in range(2):
            row = 184 + 2*T + ph
            A(f'v_bfe_u32 v177, v{row}, 7, 1')
            A(f'v_lshlrev_b32 v177, 3, v177')
            A(f'v_xor_b32 v177, v177, v{m}')
            A(f'v_xor_b32 v177, v177, v180')
            for hk in range(4):
                A(f'v_xor_b32 v176, {hk*4}, v177')
                A(f'v_lshl_add_u32 v{AD+(T*2+ph)*4+hk}, v176, 4, v{row}')
    A('s_barrier')
    GW = {'A0': (0, 0), 'B0x': (0, 1), 'B0y': (1, 0), 'B0z': (1, 1), 'B1x': (2, 0), 'B1y': (2, 1),
          'B1z': (3, 0), 'B2z': (3, 1), 'A1': (4, 0), 'B2x': (4, 1), 'B2y': (5, 0)}
    jobs = []
    for f in range(20):
        fp = f if f < 8 else f - 8
        gi, ph, ks = fp >> 2, (fp >> 1) & 1, fp & 1
        for comp in ([0] if f < 8 else [1, 2, 3]):
            g = f'A{gi}' if f < 8 else f'B{gi}' + 'xyz'[comp-1]
            wi, hf = GW[g]
            for T in range(3):
                jobs.append((f, comp, T, AD + (T*2+ph)*4 + hf*2 + ks, wi*256))
    seen = set()
    def rd(i):
        f, comp, T, ad, off = jobs[i]
        A(f'ds_read_b128 v[{F+4*(i%NF)}:{F+4*(i%NF)+3}], v{ad} offset:{off}')
    for i in range(NF - 1): rd(i)
    lastf = -1
    for i, (f, comp, T, ad, off) in enumerate(jobs):
        if i + NF - 1 < len(jobs): rd(i + NF - 1)
        w = f's_waitcnt lgkmcnt({min(NF-1, len(jobs)-1-i)})'
        if f != lastf:
            w = f's_waitcnt vmcnt({19-f}) lgkmcnt({min(NF-1, len(jobs)-1-i)})'; lastf = f
        A(w)
        d = D + (comp*3 + T)*4
        c = f'v[{d}:{d+3}]' if (comp, T) in seen else '0'
        seen.add((comp, T))
        A(f'v_mfma_f32_16x16x32_bf16 v[{d}:{d+3}], v[{r.W+4*f}:{r.W+4*f+3}], v[{F+4*(i%NF)}:{F+4*(i%NF)+3}], {c}')
    G = 72
    A(f's_mov_b32 s{t}, 0xbfb8aa3b')
    for i in range(12): A(f'v_mul_f32 v{G+i}, s{t}, v{D+i}')
    for i in range(12): A(f'v_exp_f32 v{G+i}, v{G+i}')
    for i in range(12): A(f'v_add_f32 v{G+i}, 1.0, v{G+i}')
    for i in range(12): A(f'v_rcp_f32 v{G+i}, v{G+i}')
    A(f's_mul_i32 s{t}, s{r.sBk}, {NPB*1024}')
    A(f's_lshl_b32 s{t+1}, s{r.sWave}, 5')
    A(f's_add_u32 s{t}, s{t}, s{t+1}')
    A(f'v_lshlrev_b32 v182, 10, v179')
    A(f'v_lshl_add_u32 v182, v180, 3, v182')
    A(f'v_add_u32 v183, 0x4000, v182')
    A(f'v_add_u32 v184, 0x8000, v182')
    A(f'v_mov_b32 v185, 0x7f000000')
    A(f'v_cmp_gt_u32 vcc, {NPB-32}, v179')
    for comp in range(1, 4):
        for i in range(12):
            A(f'v_mul_f32 v{D+comp*12+i}, v{D+comp*12+i}, v{G+i}')
    A(f'v_cndmask_b32 v184, v185, v184, vcc')
    for comp in range(4):
        for T in range(3):
            d = D + (comp*3 + T)*4
            A(f'v_cvt_pk_bf16_f32 v{d}, v{d}, v{d+1}')
            A(f'v_cvt_pk_bf16_f32 v{d+1}, v{d+2}, v{d+3}')
            A(f'buffer_store_dwordx2 v[{d}:{d+1}], v{182+T}, s[{r.sOUT}:{r.sOUT+3}], s{t} offen offset:{comp*256} {opt.get("out_aux","")}')
    A('K2_end:')
    A('s_endpgm')
    A('SLOW:')
    from slow import gen_slow
    gen_slow(A, r, opt)
    return dict(name=name, vgpr=256, sgpr=r.ns, lds=LDS_TOTAL)
```

```python
import sys, json
from asmlib import *
from common import *
from k1 import gen_k1
from k2 import gen_k2

HEAD = open('standalone__tensor_product_equiv_equiformer__graph.s.ref').read().split('; Override launch')[0]

def build(opt):
    A = Asm()
    A('.amdgcn_target "amdgcn-amd-amdhsa--gfx950"')
    A('.text')
    k1 = gen_k1(A, opt)
    k2 = gen_k2(A, opt)
    A('.section .rodata,"a"')
    for k in (k1, k2):
        A('.p2align 6')
        A.L.append(kd(k['name'], k['vgpr'], k['sgpr']))
    head = HEAD
    head += '; Generated by gen/gen.py (hand-written generator). Two launches: edge partition + weight re-layout, then the main kernel.\n'
    head += f'; @launch kernel={k1["name"]} grid=({K1_GRID},1,1) block=({K1_THREADS},1,1) lds={k1["lds"]}\n'
    head += f'; @launch kernel={k2["name"]} grid=({NB},1,1) block=(512,1,1) lds={k2["lds"]}\n'
    return head + A.text()

if __name__ == '__main__':
    opt = json.loads(sys.argv[2]) if len(sys.argv) > 2 else {}
    out = sys.argv[1] if len(sys.argv) > 1 else 'standalone__tensor_product_equiv_equiformer__graph.s'
    open(out, 'w').write(build(opt))
```

```python
class Asm:
    def __init__(self):
        self.L = []
    def __call__(self, s):
        for line in s.split('\n'):
            line = line.strip()
            if line:
                if line.endswith(':') or line.startswith('.') or line.startswith(';'):
                    self.L.append(line)
                else:
                    self.L.append('    ' + line)
    def pad_since_mfma(self, dreg, need):
        n = 0
        for line in reversed(self.L):
            t = line.strip()
            if t.startswith('v_mfma') and t.split()[1].startswith(f'v[{dreg}:'): break
            if t.endswith(':'):
                if t.startswith('SUBST'): continue
                return
            if t.startswith('s_nop'): n += int(t.split()[1]) + 1
            elif not t.startswith(('.', ';')): n += 1
        if n < need: self(f's_nop {need - n - 1}')
    def text(self):
        return '\n'.join(self.L) + '\n'

def vr(a, n=1):
    return f'v{a}' if n == 1 else f'v[{a}:{a+n-1}]'
def sr(a, n=1):
    return f's{a}' if n == 1 else f's[{a}:{a+n-1}]'

class Alloc:
    def __init__(self, start, limit):
        self.p = start; self.limit = limit; self.names = {}
    def get(self, name, n=1, align=1):
        self.p = (self.p + align - 1) // align * align
        r = self.p; self.p += n
        assert self.p <= self.limit, f'out of regs at {name}: {self.p}'
        self.names[name] = (r, n)
        return r

def srd(A, s, base, nbytes):
    A(f's_mov_b32 s{s}, s{base}')
    A(f's_and_b32 s{s+1}, s{base+1}, 0xffff')
    A(f's_mov_b32 s{s+2}, {nbytes}')
    A(f's_mov_b32 s{s+3}, 0x20000')

def kd(name, vgpr, sgpr):
    acc = (vgpr + 3) // 4 * 4
    return f'''.amdhsa_kernel {name}
  .amdhsa_next_free_vgpr {vgpr}
  .amdhsa_next_free_sgpr {sgpr}
  .amdhsa_accum_offset {acc}
  .amdhsa_group_segment_fixed_size 0
  .amdhsa_kernarg_size 96
  .amdhsa_user_sgpr_count 2
  .amdhsa_user_sgpr_kernarg_segment_ptr 1
  .amdhsa_system_sgpr_workgroup_id_x 1
.end_amdhsa_kernel'''
```

```python
N = 10000; E = 320000; C = 128
NB = 250; NPB = 40
G1 = 125; G1P = 128; EPW = 2560
CAP = 32; CELL = 384
K1_THREADS = 640
K1_PF0 = G1 + 16 + 4 + 7
PF_PARTS = 13
K1_GRID = K1_PF0 + 8 * PF_PARTS
WS_CELLS = 0
WS_WSI = NB * G1P * CELL
WS_WRAD = WS_WSI + 160 * 1024
WS_USED = WS_WRAD + 40 * 1024
K1_NAME = 'tp_prep_kernel'
K2_NAME = 'standalone__tensor_product_equiv_equiformer__graph_kernel'
WS_STAMP = 16 << 20
```

```python
from asmlib import *
from common import *

def gen_k1(A, opt):
    name = K1_NAME
    A(f'.globl {name}\n.p2align 8\n.type {name},@function\n{name}:')
    A(f's_cmp_ge_u32 s2, {K1_GRID}')
    A('s_cbranch_scc1 K1_end')
    A('s_load_dwordx2 s[4:5], s[0:1], 8')
    A('s_load_dwordx4 s[8:11], s[0:1], 24')
    A('s_load_dwordx4 s[12:15], s[0:1], 40')
    A('s_load_dwordx2 s[16:17], s[0:1], 56')
    A('s_load_dwordx2 s[18:19], s[0:1], 88')
    if opt.get('stamps'):
        A(f's_{opt["stamps"]} s[46:47]')
    A(f's_cmp_ge_u32 s2, {G1}')
    A('s_cbranch_scc1 K1_wprep')
    CNT = NB * CELL
    DUM = CNT + 1024
    A('v_and_b32 v1, 255, v0')
    A('v_lshlrev_b32 v1, 2, v1')
    A('v_mov_b32 v2, 0')
    A(f'v_add_u32 v1, {CNT}, v1')
    A('ds_write_b32 v1, v2')
    A('v_lshlrev_b32 v3, 4, v0')
    A('v_mul_u32_u24 v4, 24, v0')
    A(f's_mul_i32 s3, s2, {EPW*4}')
    A(f's_mul_i32 s20, s2, {EPW*6}')
    A(f's_mul_i32 s21, s2, {EPW}')
    A('s_waitcnt lgkmcnt(0)')
    srd(A, 24, 10, E*4)
    srd(A, 28, 8, E*4)
    srd(A, 32, 4, E*6)
    srd(A, 36, 18, WS_USED)
    A('buffer_load_dwordx4 v[8:11], v3, s[24:27], s3 offen')
    A('buffer_load_dwordx4 v[12:15], v3, s[28:31], s3 offen')
    A('buffer_load_dwordx4 v[16:19], v4, s[32:35], s20 offen')
    A('buffer_load_dwordx2 v[20:21], v4, s[32:35], s20 offen offset:16')
    A('v_lshl_add_u32 v5, v0, 2, s21')
    A('v_mov_b32 v6, 1')
    A('s_mov_b32 s22, 52429')
    A('s_mov_b32 s23, 0x05040100')
    A('s_barrier')
    A('s_waitcnt vmcnt(3)')
    for i in range(4):
        A(f'v_mul_u32_u24 v{22+i}, s22, v{8+i}')
    for i in range(4):
        A(f'v_lshrrev_b32 v{22+i}, 21, v{22+i}')
    for i in range(4):
        A(f'v_min_u32 v{22+i}, {NB-1}, v{22+i}')
    for i in range(4):
        A(f'v_lshlrev_b32 v{34+i}, 2, v{22+i}')
    for i in range(4):
        A(f'v_add_u32 v{34+i}, {CNT}, v{34+i}')
        A(f'ds_add_rtn_u32 v{26+i}, v{34+i}, v6')
    for i in range(4):
        A(f'v_mul_u32_u24 v{30+i}, {NPB}, v{22+i}')
        A(f'v_sub_u32 v{30+i}, v{8+i}, v{30+i}')
        A(f'v_and_b32 v{30+i}, 63, v{30+i}')
        A(f'v_add_u32 v7, {i}, v5')
        A(f'v_lshl_or_b32 v{30+i}, v{30+i}, 19, v7')
        A(f'v_mul_u32_u24 v{22+i}, {CELL}, v{22+i}')
    A('s_waitcnt vmcnt(0)')
    A('v_mov_b32 v40, v16')
    A('v_perm_b32 v41, v12, v17, s23')
    A('v_alignbit_b32 v42, v18, v17, 16')
    A('v_alignbit_b32 v43, v13, v18, 16')
    A('v_mov_b32 v44, v19')
    A('v_perm_b32 v45, v14, v20, s23')
    A('v_alignbit_b32 v46, v21, v20, 16')
    A('v_alignbit_b32 v47, v15, v21, 16')
    A(f'v_mov_b32 v48, {DUM}')
    A('s_waitcnt lgkmcnt(0)')
    for i in range(4):
        A(f'v_cmp_gt_u32 vcc, {CAP}, v{26+i}')
        A(f'v_lshl_add_u32 v{34+i}, v{26+i}, 2, v{22+i}')
        A(f'v_lshl_add_u32 v{8+i}, v{26+i}, 3, v{22+i}')
        A(f'v_cndmask_b32 v{34+i}, v48, v{34+i}, vcc')
        A(f'v_cndmask_b32 v{8+i}, v48, v{8+i}, vcc')
        A(f'ds_write_b32 v{34+i}, v{30+i}')
        A(f'ds_write_b64 v{8+i}, v[{40+2*i}:{41+2*i}] offset:128')
    A('v_lshrrev_b32 v1, 4, v0')
    A('v_and_b32 v2, 15, v0')
    A(f'v_mul_u32_u24 v3, {CELL}, v1')
    A('v_lshl_add_u32 v3, v2, 4, v3')
    A('v_lshlrev_b32 v4, 2, v1')
    A(f'v_add_u32 v4, {CNT}, v4')
    A(f's_mov_b32 s22, {G1P*CELL}')
    A('v_mul_lo_u32 v5, s22, v1')
    A('v_lshl_add_u32 v5, v2, 4, v5')
    A(f's_mul_i32 s3, s2, {CELL}')
    A('v_lshlrev_b32 v6, 2, v2')
    A('v_subrev_u32 v7, 8, v2')
    A('v_lshlrev_b32 v7, 1, v7')
    A('v_cmp_gt_u32 vcc, 8, v2')
    A('s_nop 1')
    A('v_cndmask_b32 v6, v7, v6, vcc')
    A('v_cmp_eq_u32 s[40:41], 0, v2')
    A('v_lshl_add_u32 v7, v2, 1, 16')
    A('s_waitcnt lgkmcnt(0)')
    A('s_barrier')
    CPR = K1_THREADS // 16
    NR = (NB + CPR - 1) // CPR
    for r in range(NR):
        off = r * CPR * CELL
        if off + 0 > 65535 - 256:
            if r * CPR * CELL - CPR * CELL <= 65535 - 256:
                A(f'v_add_u32 v49, {off}, v3'); base2 = off
            A(f'ds_read_b128 v[{52+4*r}:{55+4*r}], v49 offset:{off-base2}')
        else:
            A(f'ds_read_b128 v[{52+4*r}:{55+4*r}], v3 offset:{off}')
        A(f'ds_read_b32 v{8+r}, v4 offset:{r*CPR*4}')
    for r in range(NR):
        A(f's_waitcnt lgkmcnt({2*(NR-1-r)})')
        A(f'v_min_u32 v20, 127, v{8+r}')
        A(f'v_and_b32 v21, 0x1ffffff, v{52+4*r}')
        A('v_lshl_or_b32 v21, v20, 25, v21')
        A(f'v_cndmask_b32 v{52+4*r}, v{52+4*r}, v21, s[40:41]')
        A(f'v_cmp_lt_u32 vcc, v6, v{8+r}')
        A('s_or_b64 vcc, vcc, s[40:41]')
        if (r + 1) * CPR > NB:
            A(f'v_cmp_gt_u32 s[42:43], {NB - r*CPR}, v1')
            A('s_and_b64 vcc, vcc, s[42:43]')
        A('s_and_saveexec_b64 s[44:45], vcc')
        A(f's_cbranch_execz K1_skip{r}')
        A(f'buffer_store_dwordx4 v[{52+4*r}:{55+4*r}], v5, s[36:39], s3 offen {opt.get("k1_st","")}')
        A(f'K1_skip{r}:')
        A('s_mov_b64 exec, s[44:45]')
        A(f'v_cmp_lt_u32 vcc, v7, v{8+r}')
        A(f'v_cmp_gt_u32 s[42:43], 8, v2')
        A('s_and_b64 vcc, vcc, s[42:43]')
        if (r + 1) * CPR > NB:
            A(f'v_cmp_gt_u32 s[42:43], {NB - r*CPR}, v1')
            A('s_and_b64 vcc, vcc, s[42:43]')
        A('s_and_saveexec_b64 s[44:45], vcc')
        A(f's_cbranch_execz K1_skipb{r}')
        A(f'v_add_u32 v20, {r*CPR*CELL+256}, v3')
        A('ds_read_b128 v[24:27], v20')
        A('s_waitcnt lgkmcnt(0)')
        A(f'buffer_store_dwordx4 v[24:27], v5, s[36:39], s3 offen offset:256 {opt.get("k1_st","")}')
        A('s_nop 1')
        A(f'K1_skipb{r}:')
        A('s_mov_b64 exec, s[44:45]')
        A(f's_add_u32 s3, s3, {CPR*G1P*CELL}')
    if opt.get('stamps'):
        A('s_waitcnt vmcnt(0)')
        A(f's_{opt["stamps"]} s[44:45]')
        A('s_waitcnt lgkmcnt(0)')
        A(f's_mov_b32 s38, {WS_STAMP+65536}')
        A('s_lshl_b32 s3, s2, 6')
        A(f's_add_u32 s3, s3, {WS_STAMP}')
        A('v_mov_b32 v0, 0\nv_mov_b32 v2, s46\nv_mov_b32 v3, s44')
        A('buffer_store_dwordx2 v[2:3], v0, s[36:39], s3 offen')
    A('s_endpgm')
    A('K1_wprep:')
    A('v_lshrrev_b32 v1, 6, v0')
    A('v_and_b32 v2, 63, v0')
    A('v_readfirstlane_b32 s3, v1')
    A(f's_sub_u32 s20, s2, {G1}')
    A(f's_mul_i32 s20, s20, {K1_THREADS//64}')
    A('s_add_u32 s20, s20, s3')
    A('s_waitcnt lgkmcnt(0)')
    srd(A, 36, 18, WS_USED)
    srd(A, 24, 14, 256*128*2)
    srd(A, 28, 12, 16*640*2)
    A('v_lshlrev_b32 v3, 4, v2')
    A('s_cmp_ge_u32 s20, 200')
    A('s_cbranch_scc1 K1_warm')
    A('s_cmp_ge_u32 s20, 160')
    A('s_cbranch_scc1 K1_wrad')
    A('s_mul_i32 s21, s20, 3277')
    A('s_lshr_b32 s21, s21, 16')
    A('s_mul_i32 s22, s21, 20')
    A('s_sub_u32 s22, s20, s22')
    A('s_cmp_lt_u32 s22, 8')
    A('s_cbranch_scc1 K1_w0')
    srd(A, 24, 16, 384*128*2)
    A('s_sub_u32 s22, s22, 8')
    A('K1_w0:')
    A('s_lshr_b32 s23, s22, 1')
    A('s_lshl_b32 s23, s23, 6')
    A('s_and_b32 s40, s22, 1')
    A('s_lshl_b32 s40, s40, 4')
    A('s_add_u32 s23, s23, s40')
    A('s_lshl_b32 s23, s23, 8')
    A('s_lshl_b32 s40, s21, 5')
    A('s_add_u32 s23, s23, s40')
    A('s_add_u32 s41, s23, 8192')
    A('v_lshrrev_b32 v4, 4, v2')
    A('v_lshlrev_b32 v4, 10, v4')
    A('v_and_b32 v5, 15, v2')
    A('v_lshl_add_u32 v4, v5, 1, v4')
    for j in range(4):
        A(f'buffer_load_ushort v{8+j}, v4, s[24:27], s23 offen offset:{j*256}')
        A(f'buffer_load_ushort v{12+j}, v4, s[24:27], s41 offen offset:{j*256}')
    A('s_lshl_b32 s40, s20, 10')
    A(f's_add_u32 s40, s40, {WS_WSI}')
    A('s_waitcnt vmcnt(0)')
    for j in range(4):
        A(f'v_lshl_or_b32 v{8+j}, v{12+j}, 16, v{8+j}')
    A('buffer_store_dwordx4 v[8:11], v3, s[36:39], s40 offen')
    A('s_endpgm')
    A('K1_wrad:')
    A('s_sub_u32 s20, s20, 160')
    A('s_cmp_ge_u32 s20, 20')
    A('s_cselect_b32 s21, 1, 0')
    A('s_mul_i32 s22, s21, 20')
    A('s_sub_u32 s22, s20, s22')
    A('s_lshr_b32 s23, s22, 2')
    A('s_lshl_b32 s23, s23, 8')
    A('s_lshl_b32 s40, s21, 7')
    A('s_add_u32 s23, s23, s40')
    A('s_bfe_u32 s40, s22, 0x10001')
    A('s_lshl_b32 s40, s40, 6')
    A('s_add_u32 s23, s23, s40')
    A('s_and_b32 s40, s22, 1')
    A('s_mul_i32 s40, s40, 8*1280')
    A('s_add_u32 s23, s23, s40')
    A('v_lshrrev_b32 v4, 5, v2')
    A('v_mul_u32_u24 v4, 5120, v4')
    A('v_and_b32 v5, 31, v2')
    A('v_lshl_add_u32 v4, v5, 1, v4')
    for j in range(4):
        A(f'buffer_load_ushort v{8+j}, v4, s[28:31], s23 offen offset:{j*1280}')
    A('s_lshl_b32 s40, s20, 10')
    A(f's_add_u32 s40, s40, {WS_WRAD}')
    A('s_waitcnt vmcnt(0)')
    for j in range(4):
        A(f'v_lshlrev_b32 v{8+j}, 16, v{8+j}')
    A('buffer_store_dwordx4 v[8:11], v3, s[36:39], s40 offen')
    A('s_endpgm')
    A('K1_warm:')
    A(f's_cmp_lt_u32 s2, {K1_PF0}')
    A('s_cbranch_scc1 K1_end')
    A('s_load_dwordx2 s[4:5], s[0:1], 0')
    A(f's_sub_u32 s20, s2, {K1_PF0}')
    A('s_lshr_b32 s20, s20, 3')
    if opt.get('pf_code', 1):
        A('s_cmp_lg_u32 s20, 0')
        A('s_cbranch_scc1 K1_warm_x')
        A('s_getpc_b64 s[6:7]')
        A('K1_pc:')
        A(f's_add_u32 s6, s6, {K2_NAME}-K1_pc')
        A('s_addc_u32 s7, s7, 0')
        A('v_lshlrev_b32 v4, 7, v0')
        A(f'v_min_u32 v4, K2_last-{K2_NAME}, v4')
        A('v_mov_b32 v5, s7')
        A('v_add_co_u32 v4, vcc, s6, v4')
        A('s_nop 1')
        A('v_addc_co_u32 v5, vcc, 0, v5, vcc')
        A('global_load_dword v6, v[4:5], off')
    A('K1_warm_x:')
    npf = opt.get('k1pf', 3)
    A(f's_mul_i32 s20, s20, {K1_THREADS//64}')
    A('s_add_u32 s20, s20, s3')
    A(f's_mul_i32 s20, s20, {npf*16384}')
    A('v_lshlrev_b32 v4, 8, v2')
    A('s_waitcnt lgkmcnt(0)')
    srd(A, 24, 4, N*1024)
    for i in range(npf):
        A(f'buffer_load_dword v{8+i}, v4, s[24:27], s20 offen')
        A('s_add_u32 s20, s20, 16384')
    if opt.get('pf_ea'):
        A('s_load_dwordx2 s[6:7], s[0:1], 16')
        A(f's_sub_u32 s20, s2, {K1_PF0}')
        A(f's_mul_i32 s20, s20, {K1_THREADS//64}')
        A('s_add_u32 s20, s20, s3')
        A(f's_mul_i32 s20, s20, {77*128}')
        A('v_lshlrev_b32 v4, 7, v2')
        A('s_waitcnt lgkmcnt(0)')
        srd(A, 28, 6, E*32)
        A('buffer_load_dword v12, v4, s[28:31], s20 offen nt')
        A('s_add_u32 s20, s20, 8192')
        A('s_mov_b64 exec, 0x1fff')
        A('buffer_load_dword v13, v4, s[28:31], s20 offen nt')
    if opt.get('pf_wait'): A('s_waitcnt vmcnt(0)')
    A('K1_end:')
    A('s_endpgm')
    return dict(name=name, vgpr=88, sgpr=48, lds=NB*CELL+1024+256)
```

```python
from asmlib import *
from common import *

RING = 0
WR1 = 65536
CNT = WR1 + 20480
PGW = CNT + 256
TAB = PGW + 256
DUM = TAB + 384
RAW = DUM + 128
LDS_TOTAL = 163840
RAWCAP = LDS_TOTAL - RAW
PROW = 1536
PAT = 0x7f007f00
assert RAW % 128 == 0

class R: pass
_pl = [0]

def alloc():
    r = R()
    v = Alloc(0, 256)
    r.ACC = v.get('acc', 64)
    r.AC = v.get('acache', 32)
    r.W = v.get('w', 80)
    r.BF = v.get('bf', 8)
    r.CAR = v.get('car', 8)
    r.ST = v.get('stash', 30)
    r.V = v.get('V', 8)
    r.Y = v.get('Y', 4)
    r.B0 = v.get('b0'); r.B1 = v.get('b1')
    r.LO = v.get('laneoff')
    r.EAL = v.get('eal'); r.YL = v.get('yl'); r.SL = v.get('sl'); r.PL = v.get('pl')
    r.EAB = v.get('eab'); r.YB = v.get('yb')
    r.PA = v.get('pa')
    r.T = v.get('t', 4)
    r.EL = v.get('el'); r.EO = v.get('eo')
    r.LANE = v.get('lane')
    r.PG = v.get('pg', 2)
    r.nv = v.p
    s = Alloc(4, 102)
    r.sX = s.get('X', 4, 4); r.sX1 = s.get('X1', 4, 4); r.sEA = s.get('EA', 4, 4); r.sWS = s.get('WS', 4, 4); r.sOUT = s.get('OUT', 4, 4)
    r.sWave = s.get('wave'); r.sRing = s.get('ring')
    r.sM = s.get('meta', 5)
    r.sC = s.get('C', 4)
    r.sPS = s.get('PS', 4)
    r.sA = s.get('A', 4)
    r.sS = s.get('S'); r.sSn = s.get('Sn'); r.sRn = s.get('Rn'); r.sRc = s.get('Rc')
    r.sIt = s.get('it'); r.sIdx = s.get('idx')
    r.sYm = s.get('ym', 2, 2)
    r.sE0 = s.get('e0', 2, 2); r.sE1 = s.get('e1', 2, 2); r.sEm0 = s.get('em0'); r.sEm1 = s.get('em1')
    r.sT = s.get('t', 8, 2)
    r.sTab = s.get('tab', 2, 2)
    r.sEx = s.get('ex', 16, 4)
    r.sP = r.sEx
    r.sBk = s.get('bucket')
    r.sH = s.get('H'); r.sHn = s.get('Hn'); r.sTog = r.sS; r.sCnt = s.get('cnt')
    r.sStT = s.get('stt', 2, 2); r.sSt = s.get('st', 10)
    r.ns = s.p
    return r

def acc(r, t, blk, i=0): return r.ACC + (blk * 2 + t) * 16 + i
def wreg(r, k, blk, i): return r.W + k * 16 + blk * 8 + i
def ac(r, s, t): return r.AC + s * 8 + t * 4

def lbuild(r, s, half=False):
    o = []
    E_ = ac(r, s, 1); A0 = ac(r, s, 0); Y = r.Y + s
    U = [(r.CAR, r.CAR + 1), (r.CAR + 2, r.CAR + 3)]; P = r.CAR + 4
    def unp(j):
        u = U[j & 1]
        o.append(f'v_lshlrev_b32 v{u[0]}, 16, v{E_+j}')
        o.append(f'v_and_b32 v{u[1]}, 0xffff0000, v{E_+j}')
    dpp = lambda d, k, u: f'v_mul_f32_dpp v{d}, v{Y}, v{u} row_newbcast:{k} row_mask:0xf bank_mask:0xf'
    if OPT.get('no_lb'): return []
    nj = 2 if half else 4
    unp(0); unp(1)
    for j in range(nj):
        u = U[j & 1]
        o.append(dpp(P, 2*j, u[0])); o.append(dpp(P+1, 2*j+1, u[1]))
        o.append(dpp(P+2, 8+2*j, u[0])); o.append(dpp(P+3, 9+2*j, u[1]))
        if j + 2 < nj: unp(j + 2)
        o.append(f'v_cvt_pk_bf16_f32 v{A0+j}, v{P}, v{P+1}')
        o.append(f'v_cvt_pk_bf16_f32 v{E_+j}, v{P+2}, v{P+3}')
    return o

def chain(dst, a0, w0, neg=False, init=True):
    o = []
    for i in range(1 if OPT.get('no_epi') else 8):
        if i == 0 and init:
            o.append(f'v_mul_f32_e64 v{dst}, v{a0}, -v{w0}' if neg else f'v_mul_f32 v{dst}, v{a0}, v{w0}')
        elif neg:
            o.append(f'v_fma_f32 v{dst}, v{a0+i}, -v{w0+i}, v{dst}')
        else:
            o.append(f'v_fmac_f32 v{dst}, v{a0+i}, v{w0+i}')
    return o

def epi_pieces(r, b, phase):
    car = lambda j, blk: r.CAR + j * 2 + blk
    tmp = lambda blk: r.T + 2 + blk
    swap = lambda x, y: f'v_permlane32_swap_b32 v{x}, v{y}'
    add = lambda x, y: f'v_add_f32 v{y}, v{x}, v{y}'
    E = []
    for blk in range(2):
        a = lambda aa: acc(r, aa >> 1, blk, (aa & 1) * 8)
        w = lambda k: wreg(r, k, blk, 0)
        if b == 0:
            E.append(chain(car(0, blk), a(0), w(0)) + chain(car(1, blk), a(1), w(2)))
            E.append(chain(car(2, blk), a(2), w(2)) + chain(car(3, blk), a(3), w(2)))
        elif b == 1:
            E.append(chain(car(0, blk), a(0), w(3)) + chain(car(1, blk), a(1), w(1)))
            E.append(chain(car(2, blk), a(2), w(4), neg=True) + chain(car(3, blk), a(3), w(4)))
        elif b == 2:
            E.append(chain(tmp(blk), a(0), w(3)) + chain(car(2, blk), a(1), w(4), init=False))
            E.append([swap(car(0, blk), tmp(blk))] + chain(car(1, blk), a(2), w(1), init=False)
                     + [add(car(0, blk), tmp(blk))] + chain(car(0, blk), a(3), w(4), neg=True))
        else:
            E.append(chain(tmp(blk), a(0), w(3)) + chain(car(3, blk), a(1), w(4), neg=True, init=False))
            E.append(chain(car(0, blk), a(2), w(4), init=False) + chain(car(1, blk), a(3), w(1), init=False))
    R = []
    if b == 0:
        pairs = [(0, lambda k: car(0, k), lambda k: car(1, k)), (1, lambda k: car(2, k), lambda k: car(3, k))]; done = []
    elif b == 1:
        pairs = []; done = []
    elif b == 2:
        pairs = []; done = [(2, tmp)]
    else:
        pairs = [(3, tmp, lambda k: car(2, k)), (5, lambda k: car(3, k), lambda k: r.T + k), (4, lambda k: car(1, k), lambda k: car(0, k))]; done = []
    for blk in range(2):
        for (wi, fa, fb) in pairs: R.append(swap(fa(blk), fb(blk)))
    for blk in range(2):
        for (wi, fa, fb) in pairs: R.append(add(fa(blk), fb(blk)))
    outs = [(wi, fb) for (wi, fa, fb) in pairs] + done
    nw = 0
    if outs:
        if phase == 0:
            R.append(f's_set_gpr_idx_on s{r.sIdx}, gpr_idx(DST)')
            R.append('s_nop 0')
            for (wi, f) in outs: R.append(f'v_cvt_pk_bf16_f32 v{r.ST+wi}, v{f(0)}, v{f(1)}')
            R.append('s_set_gpr_idx_off')
        else:
            for (wi, f) in outs: R.append(f'v_cvt_pk_bf16_f32 v{f(0)}, v{f(0)}, v{f(1)}')
            for (wi, f) in outs: R.append(f'ds_write_b32 v{r.PA}, v{f(0)} offset:{wi*256}')
            nw = len(outs)
    return E, R, nw

OPT = {}
def dma_m0(A, r, slot):
    if OPT.get('no_dma'): return
    A(f's_add_u32 m0, s{r.sRing}, {slot*2048}')

def dma(A, r, vreg, soff, half=False, part=None):
    if OPT.get('no_dma'): return 0
    n = 0
    if part in (None, 0):
        A(f'buffer_load_dwordx4 v{vreg}, s[{r.sX}:{r.sX+3}], s{soff} offen lds'); n += 1
    if part in (None, 1) and not half:
        A(f'buffer_load_dwordx4 v{vreg+1}, s[{r.sX1}:{r.sX1+3}], s{soff} offen offset:1024 lds'); n += 1
    return n

def bread(A, r, slot, blk, half=False):
    b = r.B0 if blk == 0 else r.B1
    n = 1 if half else 2
    for j in range(n):
        A(f'ds_read_b64_tr_b16 v[{r.BF+blk*4+2*j}:{r.BF+blk*4+2*j+1}], v{b} offset:{slot*2048+j*1024}')
    return n

def earead(A, r, steps):
    n = 0
    for s, half in steps:
        for j in range(1 if half else 2):
            A(f'ds_read_b64_tr_b16 v[{ac(r,s,1)+2*j}:{ac(r,s,1)+2*j+1}], v{r.EAB} offset:{s*512+j*256}'); n += 1
    A(f's_mov_b64 exec, s[{r.sYm}:{r.sYm+1}]')
    for s, half in steps:
        A(f'ds_read_u16_d16_hi v{r.Y+s}, v{r.YB} offset:{s*128}'); n += 1
    A('s_mov_b64 exec, -1')
    return n

def srcread(A, r, j):
    A(f'v_add_u32 v{r.T}, s{r.sA+j}, v{r.SL}')
    A(f'ds_read_u16 v{r.V+2*j}, v{r.T}')
    A(f'ds_read_u16 v{r.V+2*j+1}, v{r.T} offset:64')

def srcfix(A, r, j):
    for q in range(2):
        if OPT.get('oob'): A(f'v_mov_b32 v{r.V+2*j+q}, 0x7f000000')
        elif OPT.get('small'):
            A(f'v_and_b32 v{r.V+2*j+q}, {OPT["small"]-1}, v{r.V+2*j+q}')
            A(f'v_lshl_add_u32 v{r.V+2*j+q}, v{r.V+2*j+q}, 10, v{r.LO}')
        else: A(f'v_lshl_add_u32 v{r.V+2*j+q}, v{r.V+2*j+q}, 10, v{r.LO}')

def mfma(r, T, s, first, half=False):
    if OPT.get('no_mfma'): return 's_nop 0'
    t, blk = T & 1, T >> 1
    d = acc(r, t, blk)
    c = '0' if first else f'v[{d}:{d+15}]'
    if half:
        return f'v_mfma_f32_32x32x8_bf16 v[{d}:{d+15}], v[{ac(r,s,t)}:{ac(r,s,t)+1}], v[{r.BF+blk*4}:{r.BF+blk*4+1}], {c}'
    return f'v_mfma_f32_32x32x16_bf16 v[{d}:{d+15}], v[{ac(r,s,t)}:{ac(r,s,t)+3}], v[{r.BF+blk*4}:{r.BF+blk*4+3}], {c}'

class Q:
    def __init__(self, mx): self.q = []; self.mx = mx
    def add(self, tag, n=1): self.q += [tag] * n
    def need(self, *tags):
        idx = [i for i, t in enumerate(self.q) if t in tags]
        if not idx: return None
        n = len(self.q) - 1 - idx[-1]
        self.q = self.q[idx[-1] + 1:]
        return min(n, self.mx)

def wait(A, vm=None, lg=None, force=False):
    p = []
    if vm is not None: p.append(f'vmcnt({vm})')
    if lg is not None and not OPT.get('no_lgkm'): p.append(f'lgkmcnt({lg})')
    if p: A('s_waitcnt ' + ' '.join(p))
    elif force: A('s_nop 0')

def item(A, r, H, phase, opt):
    S = (H + 1) // 2
    ishalf = lambda s: (H & 1) and s == S - 1
    A(f'ITEM_{phase}_{H}:')
    lg = Q(15); vm = Q(63)
    lg.add('B0', 2); lg.add('B1', 2); lg.add('E0', 3)
    for c in (1, 2, 3): vm.add(f'C{c}', 2)
    n = 4 * S
    if S > 1:
        lg.add('E1', earead(A, r, [(s, ishalf(s)) for s in range(1, S)]))
    vfree = {j: (3*S + j - 4 if (j < S and 3*S + j >= 4) else -1) for j in range(4)}
    for j in range(4):
        if vfree[j] < 0:
            srcread(A, r, j); lg.add(f'V{j}', 2)
    if phase == 0:
        A(f'v_add_u32 v{r.T+1}, s{r.sRn}, v{r.EL}')
        A(f'ds_read_b32 v{r.T+2}, v{r.T+1}')
        A(f'ds_read_b32 v{r.T+3}, v{r.T+1} offset:1024')
        lg.add('X', 2)
    else:
        A(f'v_xor_b32 v{r.PA}, s{r.sT+7}, v{r.PL}')
        A(f'v_add_u32 v{r.PA}, s{r.sRc}, v{r.PA}')
    wait(A, lg=lg.need('E0'))
    for o in lbuild(r, 0, ishalf(0)): A(o)
    A('s_nop 0')
    pend = None
    for c in range(n):
        b, s = divmod(c, S)
        hf = ishalf(s)
        f = [[], [], [], []]; tail = []; nw = 0
        if pend:
            E, tail, nw = pend; pend = None
            f = [E[1], E[2], E[3], []]
        elif b == 0 and s + 1 < S:
            wait(A, lg=lg.need('E1'))
            fill = lbuild(r, s + 1, ishalf(s + 1))
            k = (len(fill) + 3) // 4
            f = [fill[0:k], fill[k:2*k], fill[2*k:3*k], fill[3*k:] + ['s_nop 0']]
        wait(A, lg=lg.need('B0'))
        A(mfma(r, 0, s, s == 0, hf))
        for o in f[0]: A(o)
        A(mfma(r, 1, s, s == 0, hf))
        cn = c + 4
        if cn >= n:
            wait(A, lg=lg.need(f'V{cn-n}'))
            srcfix(A, r, cn - n)
        dma_m0(A, r, c % 4)
        wait(A, vm=vm.need(f'C{c+1}'), lg=lg.need('B1'), force=True)
        if cn < n:
            bn, sn = divmod(cn, S)
            dargs = (r.V + 2*sn, r.sC + bn, ishalf(sn))
        else:
            dargs = (r.V + 2*(cn - n), r.sPS + (cn - n), False)
        spread = OPT.get('spread') and not (phase == 0 and c == 0)
        vm.add(f'C{cn}', dma(A, r, *dargs, part=0 if spread else None))
        nh = ishalf((c + 1) % S) if c + 1 < n else False
        lg_b0 = bread(A, r, (c + 1) % 4, 0, nh)
        if phase == 0 and c == 0:
            xw = lg.need('X')
            wait(A, lg=None if xw is None else min(15, xw + lg_b0))
            for q in range(2):
                A(f'v_lshl_add_u32 v{r.T+2+q}, v{r.T+2+q}, 5, v{r.EO}')
            for q, (ex, em) in enumerate(((r.sE0, r.sEm0), (r.sE1, r.sEm1))):
                A(f's_mov_b32 m0, s{em}')
                A(f's_mov_b64 exec, s[{ex}:{ex+1}]')
                A(f'buffer_load_dwordx4 v{r.T+2+q}, s[{r.sEA}:{r.sEA+3}], 0 offen {opt.get("ea_aux","")} lds')
            A('s_mov_b64 exec, -1')
            vm.add('EA', 2)
        lg.add('B0', lg_b0)
        for o in f[1]: A(o)
        A(mfma(r, 2, s, s == 0, hf))
        if spread: vm.add(f'C{cn}', dma(A, r, *dargs, part=1))
        for j in range(4):
            if vfree[j] == c:
                srcread(A, r, j); lg.add(f'V{j}', 2)
        for o in f[2]: A(o)
        A(mfma(r, 3, s, s == 0, hf))
        lg.add('B1', bread(A, r, (c + 1) % 4, 1, nh))
        for o in f[3]: A(o)
        for o in tail: A(o)
        lg.add('P', nw)
        if c == n - 1:
            wait(A, vm=vm.need('EA'))
            A(f'v_add_u32 v{r.EAB}, s{r.sRn}, v{r.EAL}')
            A(f'v_add_u32 v{r.YB}, s{r.sA}, v{r.YL}')
            if OPT.get('fair') == 3: A(f'ds_read_b32 v{r.PG+1}, v{r.PG} offset:16')
            earead(A, r, [(0, False)])
        if s == S - 1:
            E, R, nw = epi_pieces(r, b, phase)
            stamp(A, r, opt, 'sub')
            A.pad_since_mfma(acc(r, 0, 0), 12)
            for o in E[0]: A(o)
            if c < n - 1 and not OPT.get('no_ilv'):
                pend = (E, R, nw)
            else:
                for e in E[1:]:
                    for o in e: A(o)
                A('s_nop 0')
                for o in R: A(o)
                lg.add('P', nw)
    A(f's_branch NEXT_{phase}')

def nextinfo(A, r, phase_next_reg=None):
    t = r.sT
    A(f's_and_b32 s{r.sRn}, s{r.sM+1}, 0x3ffff')
    A(f's_bfe_u32 s{r.sSn}, s{r.sM+1}, 0x30012')
    A(f's_lshr_b32 s{r.sHn}, s{r.sM+1}, 28')
    A(f's_lshl_b32 s{t}, s{r.sSn}, 9')
    A(f's_add_u32 s{r.sA}, s{r.sRn}, s{t}')
    A(f's_mul_i32 s{t}, s{r.sSn}, 12')
    A(f's_lshr_b64 s[{t+2}:{t+3}], s[{r.sTab}:{r.sTab+1}], s{t}')
    A(f's_mov_b32 s{r.sPS}, s{t+6}')
    for j in range(1, 4):
        A(f's_bfe_u32 s{t}, s{t+2}, {(2 << 16) | ((j-1)*4)}')
        A(f's_lshl_b32 s{t}, s{t}, 7')
        A(f's_add_u32 s{r.sA+j}, s{r.sA}, s{t}')
        A(f's_bfe_u32 s{t}, s{t+2}, {(2 << 16) | ((j-1)*4+2)}')
        A(f's_lshl_b32 s{t}, s{t}, 8')
        A(f's_add_u32 s{r.sPS+j}, s{t}, s{t+6}')

def table64():
    tab = 0
    for S in range(1, 5):
        f = 0
        for j in range(1, 4):
            f |= ((j % S) | ((j // S) << 2)) << ((j - 1) * 4)
        tab |= f << (12 * S)
    return tab

def eamasks(A, r):
    A(f's_mov_b32 s{r.sE0}, -1')
    A(f's_cmp_ge_u32 s{r.sSn}, 2')
    A(f's_cselect_b32 s{r.sE0+1}, -1, 0')
    A(f's_mov_b32 s{r.sEm0}, s{r.sRn}')
    A(f's_add_u32 s{r.sEm1}, s{r.sRn}, 1024')
    A(f's_cmp_ge_u32 s{r.sSn}, 3')
    A(f's_cselect_b32 s{r.sE1}, -1, 1')
    A(f's_cselect_b32 s{r.sEm1}, s{r.sEm1}, {DUM}')
    A(f's_cmp_ge_u32 s{r.sSn}, 4')
    A(f's_cselect_b32 s{r.sE1+1}, -1, 0')

HS = (4, 5, 6, 3, 8, 2)
def dispatch(A, r, phase):
    if OPT.get('fair') == 3:
        _pl[0] += 1
        A(f's_waitcnt lgkmcnt({3 + 3*phase})')
        A(f'v_readfirstlane_b32 s{r.sT}, v{r.PG+1}')
        A(f's_add_u32 s{r.sTog}, s{r.sTog}, 1')
        A(f'v_mov_b32 v{r.PG+1}, s{r.sTog}')
        A(f's_cmp_le_u32 s{r.sTog}, s{r.sT}')
        A(f'ds_write2_b32 v{r.PG}, v{r.PG+1}, v{r.PG+1} offset0:0 offset1:8')
        A('s_setprio 1')
        A(f's_cbranch_scc1 PRIO_{_pl[0]}')
        A('s_setprio 0')
        A(f'PRIO_{_pl[0]}:')
    elif OPT.get('fair'):
        _pl[0] += 1
        A(f's_xor_b32 s{r.sTog}, s{r.sTog}, 1')
        A('s_setprio 1')
        A(f's_cbranch_scc1 PRIO_{_pl[0]}')
        A('s_setprio 0')
        A(f'PRIO_{_pl[0]}:')
    for H in HS[:-1]:
        A(f's_cmp_eq_u32 s{r.sH}, {H}')
        A(f's_cbranch_scc1 ITEM_{phase}_{H}')
    A(f's_branch ITEM_{phase}_{HS[-1]}')

def rotate(A, r):
    t = r.sT
    A(f's_mov_b32 s{t}, s{r.sM}')
    for i in range(4): A(f's_mov_b32 s{r.sM+i}, s{r.sM+i+1}')
    A(f's_mov_b32 s{r.sM+4}, s{t}')
    A(f's_mov_b32 s{r.sH}, s{r.sHn}')
    A(f's_mov_b32 s{r.sRc}, s{r.sRn}')

def psigma(A, r, dst, meta):
    t = r.sT
    A(f's_bfe_u32 s{dst}, s{meta}, 0x40015')
    A(f's_bfe_u32 s{t}, s{meta}, 0x10007')
    A(f's_lshl_b32 s{t}, s{t}, 3')
    A(f's_xor_b32 s{dst}, s{dst}, s{t}')
    A(f's_lshl_b32 s{dst}, s{dst}, 4')

DEFPTS = ['start','B1','B2','B3','item0','phase1','tail','B4','gemm','end']
def stamp(A, r, opt, k):
    if not opt.get('stamps'): return
    if isinstance(k, int): k = DEFPTS[k]
    pts = opt.get('pts', DEFPTS)
    if opt.get('items') or opt.get('sub'): pts = ['item0']
    if k == 'sub':
        if not opt.get('sub'): return
        _pl[0] += 1
        A(f's_add_u32 s{r.sCnt}, s{r.sCnt}, 1')
        A(f's_cmp_gt_u32 s{r.sCnt}, {opt["sub"]+8}')
        A(f's_cbranch_scc1 SUBST_{_pl[0]}')
        A(f's_{opt["stamps"]} s[{r.sStT}:{r.sStT+1}]')
        for i in range(1, 9): A(f's_mov_b32 s{r.sSt+i}, s{r.sSt+i+1}')
        A('s_waitcnt lgkmcnt(0)')
        A(f's_mov_b32 s{r.sSt+9}, s{r.sStT}')
        A(f'SUBST_{_pl[0]}:')
        return
    if k == 'item':
        if not opt.get('items'): return
        A(f's_{opt["stamps"]} s[{r.sStT}:{r.sStT+1}]')
        for i in range(1, 9): A(f's_mov_b32 s{r.sSt+i}, s{r.sSt+i+1}')
        A('s_waitcnt lgkmcnt(0)')
        A(f's_mov_b32 s{r.sSt+9}, s{r.sStT}')
        return
    if k not in pts: return
    A(f's_{opt["stamps"]} s[{r.sStT}:{r.sStT+1}]')
    A('s_waitcnt lgkmcnt(0)')
    A(f's_mov_b32 s{r.sSt+pts.index(k)}, s{r.sStT}')

def stamp_out(A, r, opt):
    if not opt.get('stamps'): return
    t = r.sT
    A(f's_lshl_b32 s{t}, s{r.sBk}, 3')
    A(f's_add_u32 s{t}, s{t}, s{r.sWave}')
    A(f's_lshl_b32 s{t}, s{t}, 6')
    A(f's_add_u32 s{t}, s{t}, {WS_STAMP + 65536}')
    A(f's_mov_b32 s{r.sWS+2}, {WS_STAMP + 65536 + 2048*64}')
    A('v_mov_b32 v0, 0')
    for k in range(10):
        A(f'v_mov_b32 v1, s{r.sSt+k}')
        A(f'buffer_store_dword v1, v0, s[{r.sWS}:{r.sWS+3}], s{t} offen offset:{4*k}')

def gen_k2(A, opt):
    OPT.clear(); OPT.update(opt)
    r = alloc()
    name = K2_NAME
    t = r.sT
    A(f'.globl {name}\n.p2align 8\n.type {name},@function\n{name}:')
    A(f's_cmp_ge_u32 s2, {NB}')
    A('s_cbranch_scc1 K2_end')
    A(f's_load_dwordx2 s[{r.sP}:{r.sP+1}], s[0:1], 0')
    A(f's_load_dwordx2 s[{r.sP+2}:{r.sP+3}], s[0:1], 16')
    A(f's_load_dwordx2 s[{r.sP+4}:{r.sP+5}], s[0:1], 72')
    A(f's_load_dwordx2 s[{r.sP+6}:{r.sP+7}], s[0:1], 88')
    A(f's_mov_b32 s{r.sBk}, s2')
    if opt.get('k2pad'):
        for i in range(opt['k2pad'] // 8): A('v_mov_b32 v7, 0x12345678')
    stamp(A, r, opt, 0)
    L = r.LANE
    TID = 1; W0 = 8; YS = 16; RK = 32; INF = 40; X0 = 48
    A(f'v_lshrrev_b32 v2, 6, v0')
    A(f'v_and_b32 v{L}, 63, v0')
    A(f'v_readfirstlane_b32 s{r.sWave}, v2')
    A(f'v_lshrrev_b32 v2, 5, v{L}')
    A(f'v_mul_u32_u24 v2, {CELL}, v2')
    A(f'v_and_b32 v3, 31, v{L}')
    A(f'v_lshl_add_u32 v{X0}, v3, 2, v2')
    A(f'v_lshl_add_u32 v{X0+1}, v3, 3, v2')
    A(f'v_lshlrev_b32 v{X0+2}, 4, v{L}')
    A(f's_mul_i32 s{t}, s2, {G1P*CELL}')
    A(f's_mul_i32 s{t+1}, s{r.sWave}, {16*CELL}')
    A(f's_add_u32 s{t}, s{t}, s{t+1}')
    A(f's_add_u32 s{t+1}, s{t}, {4*2*CELL}')
    A(f's_lshl_b32 s{r.sRing}, s{r.sWave}, 13')
    A('s_waitcnt lgkmcnt(0)')
    stamp(A, r, opt, 'karg')
    srd(A, r.sWS, r.sP+6, WS_USED)
    for i in range(8):
        so = t if i < 4 else t + 1
        A(f'buffer_load_dword v{W0+i}, v{X0}, s[{r.sWS}:{r.sWS+3}], s{so} offen offset:{(i%4)*2*CELL}')
        A(f'buffer_load_dwordx2 v[{YS+2*i}:{YS+2*i+1}], v{X0+1}, s[{r.sWS}:{r.sWS+3}], s{so} offen offset:{(i%4)*2*CELL+128}')
    srd(A, r.sX, r.sP, N*1024)
    A(f's_sub_u32 s{r.sP}, s{r.sP}, 1024')
    A(f's_subb_u32 s{r.sP+1}, s{r.sP+1}, 0')
    srd(A, r.sX1, r.sP, N*1024 + 1024)
    srd(A, r.sEA, r.sP+2, E*32)
    srd(A, r.sOUT, r.sP+4, N*1024)
    A(f's_mul_i32 s{t+2}, s{r.sWave}, 5120')
    A(f's_add_u32 s{t+3}, s{t+2}, {WS_WRAD}')
    A(f's_cmp_ge_u32 s{r.sWave}, 4')
    A(f's_cselect_b32 s{t+4}, {WR1-20480}, 0')
    A(f's_add_u32 s{t+2}, s{t+2}, s{t+4}')
    for i in range(5):
        A(f's_add_u32 m0, s{t+2}, {i*1024}')
        A(f's_add_u32 s{t+4}, s{t+3}, {i*1024}')
        A(f'buffer_load_dwordx4 v{X0+2}, s[{r.sWS}:{r.sWS+3}], s{t+4} offen lds')
    npf = opt.get('npf', 0)
    if npf:
        A(f's_lshr_b32 s{t+2}, s2, 3')
        A(f's_mul_i32 s{t+2}, s{t+2}, {npf*8}')
        A(f's_mul_i32 s{t+3}, s{r.sWave}, {npf}')
        A(f's_add_u32 s{t+2}, s{t+2}, s{t+3}')
        A(f's_lshl_b32 s{t+2}, s{t+2}, 14')
        A(f'v_lshlrev_b32 v2, 8, v{L}')
        for i in range(npf):
            A(f'buffer_load_dword v{X0+4+i}, v2, s[{r.sX}:{r.sX+3}], s{t+2} offen')
            if i + 1 < npf: A(f's_add_u32 s{t+2}, s{t+2}, 16384')
    stamp(A, r, opt, 'loads')
    for i in range(4): A(f'v_mov_b32 v{4+i}, {PAT}')
    A(f'v_lshlrev_b32 v2, 4, v0')
    A(f'v_add_u32 v2, {RAW}, v2')
    nfull = RAWCAP // 8192
    for i in range(nfull):
        if i == 8: A('v_add_u32 v2, 0x10000, v2')
        A(f'ds_write_b128 v2, v[4:7] offset:{(i % 8)*8192}')
    rem = RAWCAP - nfull * 8192
    if rem:
        A(f'v_lshlrev_b32 v2, 4, v0')
        A(f'v_min_u32 v2, {rem-16}, v2')
        A(f'v_add_u32 v2, {RAW + nfull*8192}, v2')
        A('ds_write_b128 v2, v[4:7]')
    A(f'v_lshlrev_b32 v{r.PL}, 2, v{L}')
    A(f'v_mov_b32 v3, 0')
    A(f'v_add_u32 v2, {CNT}, v{r.PL}')
    A('ds_write_b32 v2, v3')
    A('ds_write_b32 v2, v3 offset:256')
    stamp(A, r, opt, 'prefill')
    A(f'v_lshrrev_b32 v2, 5, v{L}')
    A(f'v_bfe_u32 v3, v{L}, 2, 2')
    A(f'v_and_b32 v4, 3, v{L}')
    A(f'v_bfe_u32 v5, v{L}, 4, 1')
    A(f'v_lshlrev_b32 v6, 9, v2')
    A(f'v_lshl_add_u32 v6, v3, 7, v6')
    A(f'v_lshl_add_u32 v6, v5, 5, v6')
    A(f'v_lshl_add_u32 v6, v4, 3, v6')
    A(f'v_lshrrev_b32 v7, 1, v3')
    A(f'v_lshl_add_u32 v6, v7, 6, v6')
    A(f'v_add_u32 v{r.B0}, s{r.sRing}, v6')
    A(f'v_xor_b32 v{r.B1}, 64, v{r.B0}')
    A(f'v_lshlrev_b32 v6, 7, v2')
    A(f'v_lshl_add_u32 v6, v3, 5, v6')
    A(f'v_lshl_add_u32 v{r.EAL}, v4, 3, v6')
    A(f'v_lshl_add_u32 v6, v2, 2, v4')
    A(f'v_bfe_u32 v7, v{L}, 2, 1')
    A(f'v_lshl_add_u32 v6, v7, 3, v6')
    A(f'v_lshlrev_b32 v6, 3, v6')
    A(f'v_bfe_u32 v7, v{L}, 3, 1')
    A(f'v_add_u32 v5, 1, v5')
    A(f'v_mul_u32_u24 v7, v7, v5')
    A(f'v_lshl_add_u32 v{r.YL}, v7, 1, v6')
    A(f'v_and_b32 v6, 0x38, v{L}')
    A(f'v_add_u32 v{r.SL}, 6, v6')
    A(f'v_lshrrev_b32 v6, 2, v{L}')
    A(f'v_lshrrev_b32 v7, 4, v{L}')
    A(f'v_xor_b32 v6, v6, v7')
    A(f'v_and_b32 v6, 1, v6')
    A(f'v_lshlrev_b32 v6, 6, v6')
    A(f'v_lshl_add_u32 v{r.LO}, v4, 4, v6')
    A(f'v_lshrrev_b32 v6, 1, v{L}')
    A(f'v_lshlrev_b32 v{r.EL}, 5, v6')
    A(f'v_and_b32 v6, 1, v{L}')
    A(f'v_lshlrev_b32 v{r.EO}, 4, v6')
    for i in range(4): A(f'v_mov_b32 v{r.Y+i}, 1.0')
    A(f's_mov_b32 s{r.sYm}, 0xffffff00')
    A(f's_mov_b32 s{r.sYm+1}, 0xffffff00')
    tab = table64()
    A(f's_mov_b32 s{r.sTab}, {tab & 0xffffffff}')
    A(f's_mov_b32 s{r.sTab+1}, {tab >> 32}')
    A(f'v_mov_b32 v3, 1')
    A(f's_mov_b32 s{t+5}, 0')
    A('s_waitcnt lgkmcnt(0)')
    A('s_barrier')
    stamp(A, r, opt, 1)
    for i in range(8):
        A(f's_waitcnt vmcnt({2*(7-i)+1+5+npf})')
        if i == 0: stamp(A, r, opt, 'cell0')
        A(f'v_readlane_b32 s{t}, v{W0+i}, 0')
        A(f'v_readlane_b32 s{t+1}, v{W0+i}, 32')
        A(f'v_bfe_u32 v{INF+i}, v{W0+i}, 19, 6')
        A(f'v_lshlrev_b32 v{INF+i}, 2, v{INF+i}')
        A(f's_lshr_b32 s{t}, s{t}, 25')
        A(f's_lshr_b32 s{t+1}, s{t+1}, 25')
        if i >= 6:
            A(f's_cmp_eq_u32 s{r.sWave}, 7')
            if i == 7: A(f's_cselect_b32 s{t}, 0, s{t}')
            A(f's_cselect_b32 s{t+1}, 0, s{t+1}')
        A(f's_max_u32 s{t+5}, s{t+5}, s{t}')
        A(f's_max_u32 s{t+5}, s{t+5}, s{t+1}')
        A(f's_min_u32 s{t}, s{t}, 32')
        A(f's_min_u32 s{t+1}, s{t+1}, 32')
        A(f's_bfm_b64 s[{t+2}:{t+3}], s{t}, 0')
        A(f's_mov_b32 s{r.sEx+2*i}, s{t+2}')
        A(f's_bfm_b64 s[{t+2}:{t+3}], s{t+1}, 0')
        A(f's_mov_b32 s{r.sEx+2*i+1}, s{t+2}')
        A(f'v_add_u32 v2, {CNT}, v{INF+i}')
        A(f's_mov_b64 exec, s[{r.sEx+2*i}:{r.sEx+2*i+1}]')
        A(f'ds_add_rtn_u32 v{RK+i}, v2, v3')
        A('s_mov_b64 exec, -1')
    A(f's_cmp_gt_u32 s{t+5}, {CAP}')
    A(f's_cselect_b32 s{t}, 1000, 0')
    A(f'v_mov_b32 v2, {CNT+63*4}')
    A(f'v_mov_b32 v4, s{t}')
    A('ds_max_u32 v2, v4')
    stamp(A, r, opt, 'hist')
    A(f's_waitcnt vmcnt({npf}) lgkmcnt(0)')
    A('s_barrier')
    stamp(A, r, opt, 2)
    A(f'v_add_u32 v2, {CNT}, v{r.PL}')
    A('ds_read_b32 v4, v2')
    A(f'v_lshlrev_b32 v2, 4, v{L}')
    for i in range(20):
        A(f'ds_read_b128 v[{r.W+4*i}:{r.W+4*i+3}], v2 offset:{RING+i*1024}')
    A('s_waitcnt lgkmcnt(15)')
    A(f'v_cmp_lt_u32 vcc, 64, v4')
    A(f'v_add_u32 v5, 15, v4')
    A(f'v_lshrrev_b32 v5, 4, v5')
    A(f'v_max_u32 v5, 1, v5')
    A(f'v_min_u32 v5, 4, v5')
    A(f's_cmp_lg_u64 vcc, 0')
    A('s_cbranch_scc1 SLOW')
    A(f'v_mul_u32_u24 v6, 640, v5')
    A(f'v_max_u32 v6, {PROW}, v6')
    A(f'v_cmp_gt_u32 vcc, {NPB}, v{L}')
    A('s_nop 1')
    A(f'v_cndmask_b32 v6, 0, v6, vcc')
    A(f'v_cndmask_b32 v5, 0, v5, vcc')
    A(f'v_mov_b32 v7, v6')
    for sh in (1, 2, 4, 8):
        A('s_nop 1')
        A(f'v_add_u32_dpp v7, v7, v7 row_shr:{sh} row_mask:0xf bank_mask:0xf')
    A('s_nop 1')
    A('v_add_u32_dpp v7, v7, v7 row_bcast:15 row_mask:0xa bank_mask:0xf')
    A('s_nop 1')
    A('v_add_u32_dpp v7, v7, v7 row_bcast:31 row_mask:0xc bank_mask:0xf')
    A('s_nop 0')
    A(f'v_readlane_b32 s{t}, v7, 63')
    A(f'v_sub_u32 v7, v7, v6')
    A(f'v_add_u32 v7, {RAW}, v7')
    A(f's_cmp_gt_u32 s{t}, {RAWCAP}')
    A('s_cbranch_scc1 SLOW')
    A(f'v_lshl_or_b32 v6, v5, 18, v7')
    A(f'v_lshl_or_b32 v6, v{L}, 21, v6')
    A(f'v_add_u32 v2, 7, v4')
    A(f'v_lshrrev_b32 v2, 3, v2')
    A(f'v_max_u32 v2, 2, v2')
    A(f'v_cmp_eq_u32 vcc, 7, v2')
    A('s_nop 1')
    A(f'v_addc_co_u32 v2, vcc, 0, v2, vcc')
    A(f'v_lshl_or_b32 v6, v2, 28, v6')
    for i in range(8):
        A(f'ds_bpermute_b32 v{INF+i}, v{INF+i}, v6')
    A(f's_mov_b32 s{t+4}, 0')
    A(f'v_mov_b32 v{X0}, 63')
    for S in (4, 3, 2, 1):
        A(f'v_cmp_eq_u32 vcc, {S}, v5')
        A('s_nop 1')
        A(f'v_mbcnt_lo_u32_b32 v2, vcc_lo, 0')
        A(f'v_mbcnt_hi_u32_b32 v2, vcc_hi, v2')
        A(f'v_add_u32 v2, s{t+4}, v2')
        A(f'v_cndmask_b32 v{X0}, v{X0}, v2, vcc')
        A(f's_bcnt1_i32_b64 s{t+5}, vcc')
        A(f's_add_u32 s{t+4}, s{t+4}, s{t+5}')
    A(f'v_lshrrev_b32 v2, 3, v{X0}')
    A(f'v_and_b32 v3, 1, v2')
    A(f'v_mul_u32_u24 v3, 7, v3')
    A(f'v_xor_b32 v{X0}, v{X0}, v3')
    for rr in range(5):
        A(f's_add_u32 s{t}, s{r.sWave}, {rr*8}')
        A(f'v_cmp_eq_u32 vcc, s{t}, v{X0}')
        A(f's_ff1_i32_b64 s{t+1}, vcc')
        A(f'v_readlane_b32 s{r.sM+rr}, v6, s{t+1}')
    A(f'v_and_b32 v3, 7, v{X0}')
    A(f'v_lshlrev_b32 v3, 13, v3')
    A(f'v_mul_u32_u24 v2, {PROW}, v2')
    A(f'v_add_u32 v2, v2, v3')
    A(f'v_mov_b32 v3, v7')
    A(f'v_lshlrev_b32 v4, 3, v{L}')
    A(f'v_add_u32 v4, {TAB}, v4')
    A(f's_mov_b32 exec_hi, 0xff')
    A('ds_write_b64 v4, v[2:3]')
    A(f's_mov_b32 exec_hi, -1')
    stamp(A, r, opt, 'meta')
    A('s_waitcnt lgkmcnt(0)')
    for i in range(8):
        A(f'v_and_b32 v2, 0x3ffff, v{INF+i}')
        A(f'v_bfe_u32 v3, v{INF+i}, 18, 3')
        A(f'v_lshl_add_u32 v3, v3, 9, v2')
        A(f'v_lshl_add_u32 v2, v{RK+i}, 5, v2')
        A(f'v_lshl_add_u32 v3, v{RK+i}, 3, v3')
        A(f'v_and_b32 v{W0+i}, 0x7ffff, v{W0+i}')
        A(f's_mov_b64 exec, s[{r.sEx+2*i}:{r.sEx+2*i+1}]')
        A(f'ds_write_b32 v2, v{W0+i}')
        A(f'ds_write_b64 v3, v[{YS+2*i}:{YS+2*i+1}]')
        A('s_mov_b64 exec, -1')
    A(f's_mov_b32 s{t+6}, 0')
    A(f's_mov_b32 s{t+7}, s{r.sM+1}')
    A(f's_mov_b32 s{r.sM+1}, s{r.sM}')
    nextinfo(A, r)
    eamasks(A, r)
    A(f's_mov_b32 s{r.sM+1}, s{t+7}')
    for b in range(4): A(f's_mov_b32 s{r.sC+b}, {b*256}')
    A('s_waitcnt lgkmcnt(0)')
    A('s_barrier')
    stamp(A, r, opt, 3)
    for j in range(4): srcread(A, r, j)
    A(f'v_add_u32 v{r.T+1}, s{r.sRn}, v{r.EL}')
    A(f'ds_read_b32 v{r.T+2}, v{r.T+1}')
    A(f'ds_read_b32 v{r.T+3}, v{r.T+1} offset:1024')
    A('s_waitcnt lgkmcnt(0)')
    for q in range(2):
        A(f'v_lshl_add_u32 v{r.T+2+q}, v{r.T+2+q}, 5, v{r.EO}')
    for q, (ex, em) in enumerate(((r.sE0, r.sEm0), (r.sE1, r.sEm1))):
        A(f's_mov_b32 m0, s{em}')
        A(f's_mov_b64 exec, s[{ex}:{ex+1}]')
        A(f'buffer_load_dwordx4 v{r.T+2+q}, s[{r.sEA}:{r.sEA+3}], 0 offen {opt.get("ea_aux","")} lds')
    A('s_mov_b64 exec, -1')
    for j in range(4):
        dma_m0(A, r, j)
        srcfix(A, r, j)
        dma(A, r, r.V + 2*j, r.sPS + j)
    stamp(A, r, opt, 'dma0')
    A(f'v_add_u32 v{r.EAB}, s{r.sRn}, v{r.EAL}')
    A(f'v_add_u32 v{r.YB}, s{r.sA}, v{r.YL}')
    A(f's_mov_b32 s{r.sH}, s{r.sHn}')
    A(f's_mov_b32 s{r.sRc}, s{r.sRn}')
    nextinfo(A, r)
    eamasks(A, r)
    A(f's_mov_b32 s{r.sIt}, 0')
    A(f's_mov_b32 s{r.sIdx}, 0')
    if opt.get('sub'): A(f's_mov_b32 s{r.sCnt}, 0')
    A(f's_lshr_b32 s{r.sTog}, s{r.sWave}, 2')
    if OPT.get('fair') == 3:
        A(f's_and_b32 s{t}, s{r.sWave}, 3')
        A(f's_lshl_b32 s{t}, s{t}, 2')
        A(f's_add_u32 s{t}, s{t}, s{r.sTog}')
        A(f's_lshl_b32 s{t}, s{t}, 4')
        A(f's_add_u32 s{t}, s{t}, {PGW}')
        A(f'v_mov_b32 v{r.PG}, s{t}')
        A(f's_mov_b32 s{r.sTog}, 0')
        A(f'v_mov_b32 v{r.PG+1}, 0')
    if OPT.get('fair') == 2: A(f's_xor_b32 s{r.sTog}, s{r.sTog}, 1')
    A('s_waitcnt vmcnt(6)')
    stamp(A, r, opt, 4)
    bread(A, r, 0, 0); bread(A, r, 0, 1)
    earead(A, r, [(0, False)])
    dispatch(A, r, 0)
    A('NEXT_0:')
    stamp(A, r, opt, 'item')
    rotate(A, r)
    A(f's_add_u32 s{r.sIt}, s{r.sIt}, 1')
    A(f's_add_u32 s{r.sIdx}, s{r.sIdx}, 6')
    A(f's_cmp_eq_u32 s{r.sIt}, 5')
    A('s_cbranch_scc1 TO_PHASE1')
    A(f's_cmp_eq_u32 s{r.sIt}, 4')
    A(f's_cselect_b32 s{t+6}, 128, 0')
    nextinfo(A, r)
    eamasks(A, r)
    A(f's_cmp_eq_u32 s{r.sIt}, 4')
    A('s_cbranch_scc0 NEXT_0_go')
    for ex, em in ((r.sE0, r.sEm0), (r.sE1, r.sEm1)):
        A(f's_mov_b64 s[{ex}:{ex+1}], 1')
        A(f's_mov_b32 s{em}, {DUM}')
    A('NEXT_0_go:')
    dispatch(A, r, 0)
    A('TO_PHASE1:')
    A(f'v_lshlrev_b32 v{r.T}, 4, v{L}')
    A(f'v_add_u32 v{r.T}, {WR1}, v{r.T}')
    for i in range(20):
        A(f'ds_read_b128 v[{r.W+4*i}:{r.W+4*i+3}], v{r.T} offset:{i*1024}')
    for b in range(4): A(f's_mov_b32 s{r.sC+b}, {b*256+128}')
    A(f's_mov_b32 s{r.sIt}, 0')
    A('s_waitcnt lgkmcnt(0)')
    stamp(A, r, opt, 5)
    A('s_branch NEXT_1_go')
    A('NEXT_1:')
    if opt.get('items'):
        A(f's_cmp_eq_u32 s{r.sIt}, 4')
        A('s_cbranch_scc1 NOSTAMP')
    stamp(A, r, opt, 'item')
    if opt.get('items'): A('NOSTAMP:')
    rotate(A, r)
    A(f's_add_u32 s{r.sIt}, s{r.sIt}, 1')
    A(f's_cmp_eq_u32 s{r.sIt}, 5')
    A('s_cbranch_scc1 TAIL')
    A('NEXT_1_go:')
    nextinfo(A, r)
    psigma(A, r, t+7, r.sM)
    dispatch(A, r, 1)
    for phase in range(2):
        for H in HS:
            A('.p2align 6')
            item(A, r, H, phase, opt)
    A('.p2align 6')
    A('TAIL:')
    if OPT.get('fair'): A('s_setprio 0')
    A('s_waitcnt vmcnt(0) lgkmcnt(0)')
    stamp(A, r, opt, 6)
    A(f'v_lshlrev_b32 v{r.T}, 4, v{L}')
    A(f's_mul_i32 s{t}, s{r.sWave}, 20480')
    A(f's_add_u32 s{t}, s{t}, {WS_WSI}')
    for i in range(20):
        A(f'buffer_load_dwordx4 v[{r.W+4*i}:{r.W+4*i+3}], v{r.T}, s[{r.sWS}:{r.sWS+3}], s{t} offen offset:{(i%4)*1024}')
        if i % 4 == 3: A(f's_add_u32 s{t}, s{t}, 4096')
    for rr in range(5):
        A(f's_bfe_u32 s{t+1}, s{r.sM+rr}, 0x40015')
        A(f's_lshl_b32 s{t+1}, s{t+1}, 4')
        A(f's_add_u32 s{t+2}, s{r.sRing}, {rr*PROW}')
        A(f'v_xor_b32 v{r.PA}, s{t+1}, v{r.PL}')
        A(f'v_add_u32 v{r.PA}, s{t+2}, v{r.PA}')
        for wi in range(6):
            A(f'ds_write_b32 v{r.PA}, v{r.ST+rr*6+wi} offset:{wi*256}')
    A('GEMM:')
    D = 0; AD = 48; F = 72; NF = 6
    A(f'v_and_b32 v179, 15, v{L}')
    A(f'v_lshrrev_b32 v180, 4, v{L}')
    A(f'v_lshlrev_b32 v182, 3, v179')
    A(f'v_add_u32 v182, {TAB}, v182')
    A(f'v_min_u32 v183, {TAB + (NPB-1-32)*8}, v182')
    A(f'ds_read_b64 v[184:185], v182')
    A(f'ds_read_b64 v[186:187], v182 offset:128')
    A(f'ds_read_b64 v[188:189], v183 offset:256')
    A(f'v_min_u32 v178, {NPB-1-32}, v179')
    A('s_waitcnt lgkmcnt(0)')
    for T in range(3):
        m = 179 if T < 2 else 178
        for ph in range(2):
            row = 184 + 2*T + ph
            A(f'v_bfe_u32 v177, v{row}, 7, 1')
            A(f'v_lshlrev_b32 v177, 3, v177')
            A(f'v_xor_b32 v177, v177, v{m}')
            A(f'v_xor_b32 v177, v177, v180')
            for hk in range(4):
                A(f'v_xor_b32 v176, {hk*4}, v177')
                A(f'v_lshl_add_u32 v{AD+(T*2+ph)*4+hk}, v176, 4, v{row}')
    A('s_barrier')
    stamp(A, r, opt, 7)
    GW = {'A0': (0, 0), 'B0x': (0, 1), 'B0y': (1, 0), 'B0z': (1, 1), 'B1x': (2, 0), 'B1y': (2, 1),
          'B1z': (3, 0), 'B2z': (3, 1), 'A1': (4, 0), 'B2x': (4, 1), 'B2y': (5, 0)}
    jobs = []
    for f in range(20):
        fp = f if f < 8 else f - 8
        gi, ph, ks = fp >> 2, (fp >> 1) & 1, fp & 1
        for comp in ([0] if f < 8 else [1, 2, 3]):
            g = f'A{gi}' if f < 8 else f'B{gi}' + 'xyz'[comp-1]
            wi, hf = GW[g]
            for T in range(3):
                jobs.append((f, comp, T, AD + (T*2+ph)*4 + hf*2 + ks, wi*256))
    seen = set()
    def rd(i):
        f, comp, T, ad, off = jobs[i]
        A(f'ds_read_b128 v[{F+4*(i%NF)}:{F+4*(i%NF)+3}], v{ad} offset:{off}')
    for i in range(NF - 1): rd(i)
    lastf = -1
    for i, (f, comp, T, ad, off) in enumerate(jobs):
        if i + NF - 1 < len(jobs): rd(i + NF - 1)
        w = f's_waitcnt lgkmcnt({min(NF-1, len(jobs)-1-i)})'
        if f != lastf:
            w = f's_waitcnt vmcnt({19-f}) lgkmcnt({min(NF-1, len(jobs)-1-i)})'; lastf = f
        A(w)
        d = D + (comp*3 + T)*4
        c = f'v[{d}:{d+3}]' if (comp, T) in seen else '0'
        seen.add((comp, T))
        A(f'v_mfma_f32_16x16x32_bf16 v[{d}:{d+3}], v[{r.W+4*f}:{r.W+4*f+3}], v[{F+4*(i%NF)}:{F+4*(i%NF)+3}], {c}')
    stamp(A, r, opt, 8)
    G = 72
    A(f's_mov_b32 s{t}, 0xbfb8aa3b')
    for i in range(12): A(f'v_mul_f32 v{G+i}, s{t}, v{D+i}')
    for i in range(12): A(f'v_exp_f32 v{G+i}, v{G+i}')
    for i in range(12): A(f'v_add_f32 v{G+i}, 1.0, v{G+i}')
    for i in range(12): A(f'v_rcp_f32 v{G+i}, v{G+i}')
    A(f's_mul_i32 s{t}, s{r.sBk}, {NPB*1024}')
    A(f's_lshl_b32 s{t+1}, s{r.sWave}, 5')
    A(f's_add_u32 s{t}, s{t}, s{t+1}')
    A(f'v_lshlrev_b32 v182, 10, v179')
    A(f'v_lshl_add_u32 v182, v180, 3, v182')
    A(f'v_add_u32 v183, 0x4000, v182')
    A(f'v_add_u32 v184, 0x8000, v182')
    A(f'v_mov_b32 v185, 0x7f000000')
    A(f'v_cmp_gt_u32 vcc, {NPB-32}, v179')
    for comp in range(1, 4):
        for i in range(12):
            A(f'v_mul_f32 v{D+comp*12+i}, v{D+comp*12+i}, v{G+i}')
    A(f'v_cndmask_b32 v184, v185, v184, vcc')
    for comp in range(4):
        for T in range(3):
            d = D + (comp*3 + T)*4
            A(f'v_cvt_pk_bf16_f32 v{d}, v{d}, v{d+1}')
            A(f'v_cvt_pk_bf16_f32 v{d+1}, v{d+2}, v{d+3}')
            A(f'buffer_store_dwordx2 v[{d}:{d+1}], v{182+T}, s[{r.sOUT}:{r.sOUT+3}], s{t} offen offset:{comp*256} {opt.get("out_aux","")}')
    if opt.get('stamps'): A('s_waitcnt vmcnt(0)')
    stamp(A, r, opt, 9)
    stamp_out(A, r, opt)
    A('K2_end:')
    A('K2_last:')
    A('s_endpgm')
    A('SLOW:')
    from slow import gen_slow
    gen_slow(A, r, opt)
    return dict(name=name, vgpr=256, sgpr=r.ns, lds=LDS_TOTAL)
```

```python
from asmlib import *
from common import *

def gen_k1(A, opt):
    name = K1_NAME
    A(f'.globl {name}\n.p2align 8\n.type {name},@function\n{name}:')
    A(f's_cmp_ge_u32 s2, {K1_GRID}')
    A('s_cbranch_scc1 K1_end')
    if opt.get('k1self'):
        A('s_getpc_b64 s[6:7]')
        A('v_lshlrev_b32 v4, 7, v0')
        A('v_mov_b32 v5, s7')
        A('v_add_co_u32 v4, vcc, s6, v4')
        A('s_mov_b64 exec, 0xffffff')
        A('v_addc_co_u32 v5, vcc, 0, v5, vcc')
        A('s_cmp_eq_u32 s2, s2')
        A('global_load_dword v6, v[4:5], off')
        A('s_mov_b64 exec, -1')
    if opt.get('k1pad'):
        for i in range(opt['k1pad'] // 8): A('v_mov_b32 v7, 0x12345678')
    A('s_load_dwordx2 s[4:5], s[0:1], 8')
    A('s_load_dwordx4 s[8:11], s[0:1], 24')
    A('s_load_dwordx4 s[12:15], s[0:1], 40')
    A('s_load_dwordx2 s[16:17], s[0:1], 56')
    A('s_load_dwordx2 s[18:19], s[0:1], 88')
    if opt.get('stamps'):
        A(f's_{opt["stamps"]} s[46:47]')
    A(f's_cmp_ge_u32 s2, {G1}')
    A('s_cbranch_scc1 K1_wprep')
    CNT = NB * CELL
    DUM = CNT + 1024
    A('v_and_b32 v1, 255, v0')
    A('v_lshlrev_b32 v1, 2, v1')
    A('v_mov_b32 v2, 0')
    A(f'v_add_u32 v1, {CNT}, v1')
    A('ds_write_b32 v1, v2')
    A('v_lshlrev_b32 v3, 4, v0')
    A('v_mul_u32_u24 v4, 24, v0')
    A(f's_mul_i32 s3, s2, {EPW*4}')
    A(f's_mul_i32 s20, s2, {EPW*6}')
    A(f's_mul_i32 s21, s2, {EPW}')
    A('s_waitcnt lgkmcnt(0)')
    srd(A, 24, 10, E*4)
    srd(A, 28, 8, E*4)
    srd(A, 32, 4, E*6)
    srd(A, 36, 18, WS_USED)
    A('buffer_load_dwordx4 v[8:11], v3, s[24:27], s3 offen')
    A('buffer_load_dwordx4 v[12:15], v3, s[28:31], s3 offen')
    A('buffer_load_dwordx4 v[16:19], v4, s[32:35], s20 offen')
    A('buffer_load_dwordx2 v[20:21], v4, s[32:35], s20 offen offset:16')
    A('v_lshl_add_u32 v5, v0, 2, s21')
    A('v_mov_b32 v6, 1')
    A('s_mov_b32 s22, 52429')
    A('s_mov_b32 s23, 0x05040100')
    A('s_barrier')
    A('s_waitcnt vmcnt(3)')
    for i in range(4):
        A(f'v_mul_u32_u24 v{22+i}, s22, v{8+i}')
    for i in range(4):
        A(f'v_lshrrev_b32 v{22+i}, 21, v{22+i}')
    for i in range(4):
        A(f'v_min_u32 v{22+i}, {NB-1}, v{22+i}')
    for i in range(4):
        A(f'v_lshlrev_b32 v{34+i}, 2, v{22+i}')
    for i in range(4):
        A(f'v_add_u32 v{34+i}, {CNT}, v{34+i}')
        A(f'ds_add_rtn_u32 v{26+i}, v{34+i}, v6')
    for i in range(4):
        A(f'v_mul_u32_u24 v{30+i}, {NPB}, v{22+i}')
        A(f'v_sub_u32 v{30+i}, v{8+i}, v{30+i}')
        A(f'v_and_b32 v{30+i}, 63, v{30+i}')
        A(f'v_add_u32 v7, {i}, v5')
        A(f'v_lshl_or_b32 v{30+i}, v{30+i}, 19, v7')
        A(f'v_mul_u32_u24 v{22+i}, {CELL}, v{22+i}')
    A('s_waitcnt vmcnt(0)')
    A('v_mov_b32 v40, v16')
    A('v_perm_b32 v41, v12, v17, s23')
    A('v_alignbit_b32 v42, v18, v17, 16')
    A('v_alignbit_b32 v43, v13, v18, 16')
    A('v_mov_b32 v44, v19')
    A('v_perm_b32 v45, v14, v20, s23')
    A('v_alignbit_b32 v46, v21, v20, 16')
    A('v_alignbit_b32 v47, v15, v21, 16')
    A(f'v_mov_b32 v48, {DUM}')
    A('s_waitcnt lgkmcnt(0)')
    for i in range(4):
        A(f'v_cmp_gt_u32 vcc, {CAP}, v{26+i}')
        A(f'v_lshl_add_u32 v{34+i}, v{26+i}, 2, v{22+i}')
        A(f'v_lshl_add_u32 v{8+i}, v{26+i}, 3, v{22+i}')
        A(f'v_cndmask_b32 v{34+i}, v48, v{34+i}, vcc')
        A(f'v_cndmask_b32 v{8+i}, v48, v{8+i}, vcc')
        A(f'ds_write_b32 v{34+i}, v{30+i}')
        A(f'ds_write_b64 v{8+i}, v[{40+2*i}:{41+2*i}] offset:128')
    A('v_lshrrev_b32 v1, 4, v0')
    A('v_and_b32 v2, 15, v0')
    A(f'v_mul_u32_u24 v3, {CELL}, v1')
    A('v_lshl_add_u32 v3, v2, 4, v3')
    A('v_lshlrev_b32 v4, 2, v1')
    A(f'v_add_u32 v4, {CNT}, v4')
    A(f's_mov_b32 s22, {G1P*CELL}')
    A('v_mul_lo_u32 v5, s22, v1')
    A('v_lshl_add_u32 v5, v2, 4, v5')
    A(f's_mul_i32 s3, s2, {CELL}')
    A('v_lshlrev_b32 v6, 2, v2')
    A('v_subrev_u32 v7, 8, v2')
    A('v_lshlrev_b32 v7, 1, v7')
    A('v_cmp_gt_u32 vcc, 8, v2')
    A('s_nop 1')
    A('v_cndmask_b32 v6, v7, v6, vcc')
    A('v_cmp_eq_u32 s[40:41], 0, v2')
    A('v_lshl_add_u32 v7, v2, 1, 16')
    A('s_waitcnt lgkmcnt(0)')
    A('s_barrier')
    CPR = K1_THREADS // 16
    NR = (NB + CPR - 1) // CPR
    for r in range(NR):
        off = r * CPR * CELL
        if off + 0 > 65535 - 256:
            if r * CPR * CELL - CPR * CELL <= 65535 - 256:
                A(f'v_add_u32 v49, {off}, v3'); base2 = off
            A(f'ds_read_b128 v[{52+4*r}:{55+4*r}], v49 offset:{off-base2}')
        else:
            A(f'ds_read_b128 v[{52+4*r}:{55+4*r}], v3 offset:{off}')
        A(f'ds_read_b32 v{8+r}, v4 offset:{r*CPR*4}')
    for r in range(NR):
        A(f's_waitcnt lgkmcnt({2*(NR-1-r)})')
        A(f'v_min_u32 v20, 127, v{8+r}')
        A(f'v_and_b32 v21, 0x1ffffff, v{52+4*r}')
        A('v_lshl_or_b32 v21, v20, 25, v21')
        A(f'v_cndmask_b32 v{52+4*r}, v{52+4*r}, v21, s[40:41]')
        A(f'v_cmp_lt_u32 vcc, v6, v{8+r}')
        A('s_or_b64 vcc, vcc, s[40:41]')
        if (r + 1) * CPR > NB:
            A(f'v_cmp_gt_u32 s[42:43], {NB - r*CPR}, v1')
            A('s_and_b64 vcc, vcc, s[42:43]')
        A('s_and_saveexec_b64 s[44:45], vcc')
        A(f's_cbranch_execz K1_skip{r}')
        A(f'buffer_store_dwordx4 v[{52+4*r}:{55+4*r}], v5, s[36:39], s3 offen {opt.get("k1_st","")}')
        A(f'K1_skip{r}:')
        A('s_mov_b64 exec, s[44:45]')
        A(f'v_cmp_lt_u32 vcc, v7, v{8+r}')
        A(f'v_cmp_gt_u32 s[42:43], 8, v2')
        A('s_and_b64 vcc, vcc, s[42:43]')
        if (r + 1) * CPR > NB:
            A(f'v_cmp_gt_u32 s[42:43], {NB - r*CPR}, v1')
            A('s_and_b64 vcc, vcc, s[42:43]')
        A('s_and_saveexec_b64 s[44:45], vcc')
        A(f's_cbranch_execz K1_skipb{r}')
        A(f'v_add_u32 v20, {r*CPR*CELL+256}, v3')
        A('ds_read_b128 v[24:27], v20')
        A('s_waitcnt lgkmcnt(0)')
        A(f'buffer_store_dwordx4 v[24:27], v5, s[36:39], s3 offen offset:256 {opt.get("k1_st","")}')
        A('s_nop 1')
        A(f'K1_skipb{r}:')
        A('s_mov_b64 exec, s[44:45]')
        A(f's_add_u32 s3, s3, {CPR*G1P*CELL}')
    if opt.get('stamps'):
        A('s_waitcnt vmcnt(0)')
        A(f's_{opt["stamps"]} s[44:45]')
        A('s_waitcnt lgkmcnt(0)')
        A(f's_mov_b32 s38, {WS_STAMP+65536}')
        A('s_lshl_b32 s3, s2, 6')
        A(f's_add_u32 s3, s3, {WS_STAMP}')
        A('v_mov_b32 v0, 0\nv_mov_b32 v2, s46\nv_mov_b32 v3, s44')
        A('buffer_store_dwordx2 v[2:3], v0, s[36:39], s3 offen')
    A('s_endpgm')
    A('K1_wprep:')
    A('v_lshrrev_b32 v1, 6, v0')
    A('v_and_b32 v2, 63, v0')
    A('v_readfirstlane_b32 s3, v1')
    A(f's_sub_u32 s20, s2, {G1}')
    A(f's_mul_i32 s20, s20, {K1_THREADS//64}')
    A('s_add_u32 s20, s20, s3')
    A('s_waitcnt lgkmcnt(0)')
    srd(A, 36, 18, WS_USED)
    srd(A, 24, 14, 256*128*2)
    srd(A, 28, 12, 16*640*2)
    A('v_lshlrev_b32 v3, 4, v2')
    A('s_cmp_ge_u32 s20, 200')
    A('s_cbranch_scc1 K1_warm')
    A('s_cmp_ge_u32 s20, 160')
    A('s_cbranch_scc1 K1_wrad')
    A('s_mul_i32 s21, s20, 3277')
    A('s_lshr_b32 s21, s21, 16')
    A('s_mul_i32 s22, s21, 20')
    A('s_sub_u32 s22, s20, s22')
    A('s_cmp_lt_u32 s22, 8')
    A('s_cbranch_scc1 K1_w0')
    srd(A, 24, 16, 384*128*2)
    A('s_sub_u32 s22, s22, 8')
    A('K1_w0:')
    A('s_lshr_b32 s23, s22, 1')
    A('s_lshl_b32 s23, s23, 6')
    A('s_and_b32 s40, s22, 1')
    A('s_lshl_b32 s40, s40, 4')
    A('s_add_u32 s23, s23, s40')
    A('s_lshl_b32 s23, s23, 8')
    A('s_lshl_b32 s40, s21, 5')
    A('s_add_u32 s23, s23, s40')
    A('s_add_u32 s41, s23, 8192')
    A('v_lshrrev_b32 v4, 4, v2')
    A('v_lshlrev_b32 v4, 10, v4')
    A('v_and_b32 v5, 15, v2')
    A('v_lshl_add_u32 v4, v5, 1, v4')
    for j in range(4):
        A(f'buffer_load_ushort v{8+j}, v4, s[24:27], s23 offen offset:{j*256}')
        A(f'buffer_load_ushort v{12+j}, v4, s[24:27], s41 offen offset:{j*256}')
    A('s_lshl_b32 s40, s20, 10')
    A(f's_add_u32 s40, s40, {WS_WSI}')
    A('s_waitcnt vmcnt(0)')
    for j in range(4):
        A(f'v_lshl_or_b32 v{8+j}, v{12+j}, 16, v{8+j}')
    A('buffer_store_dwordx4 v[8:11], v3, s[36:39], s40 offen')
    A('s_endpgm')
    A('K1_wrad:')
    A('s_sub_u32 s20, s20, 160')
    A('s_cmp_ge_u32 s20, 20')
    A('s_cselect_b32 s21, 1, 0')
    A('s_mul_i32 s22, s21, 20')
    A('s_sub_u32 s22, s20, s22')
    A('s_lshr_b32 s23, s22, 2')
    A('s_lshl_b32 s23, s23, 8')
    A('s_lshl_b32 s40, s21, 7')
    A('s_add_u32 s23, s23, s40')
    A('s_bfe_u32 s40, s22, 0x10001')
    A('s_lshl_b32 s40, s40, 6')
    A('s_add_u32 s23, s23, s40')
    A('s_and_b32 s40, s22, 1')
    A('s_mul_i32 s40, s40, 8*1280')
    A('s_add_u32 s23, s23, s40')
    A('v_lshrrev_b32 v4, 5, v2')
    A('v_mul_u32_u24 v4, 5120, v4')
    A('v_and_b32 v5, 31, v2')
    A('v_lshl_add_u32 v4, v5, 1, v4')
    for j in range(4):
        A(f'buffer_load_ushort v{8+j}, v4, s[28:31], s23 offen offset:{j*1280}')
    A('s_lshl_b32 s40, s20, 10')
    A(f's_add_u32 s40, s40, {WS_WRAD}')
    A('s_waitcnt vmcnt(0)')
    for j in range(4):
        A(f'v_lshlrev_b32 v{8+j}, 16, v{8+j}')
    A('buffer_store_dwordx4 v[8:11], v3, s[36:39], s40 offen')
    A('s_endpgm')
    A('K1_warm:')
    A(f's_cmp_lt_u32 s2, {K1_PF0}')
    A('s_cbranch_scc1 K1_end')
    A('s_load_dwordx2 s[4:5], s[0:1], 0')
    A(f's_sub_u32 s20, s2, {K1_PF0}')
    A('s_lshr_b32 s20, s20, 3')
    if opt.get('pf_code', 1):
        A('s_cmp_lg_u32 s20, 0')
        A('s_cbranch_scc1 K1_warm_x')
        A('s_getpc_b64 s[6:7]')
        A('K1_pc:')
        A(f's_add_u32 s6, s6, {K2_NAME}-K1_pc')
        A('s_addc_u32 s7, s7, 0')
        A('v_lshlrev_b32 v4, 7, v0')
        A(f'v_min_u32 v4, K2_last-{K2_NAME}, v4')
        A('v_mov_b32 v5, s7')
        A('v_add_co_u32 v4, vcc, s6, v4')
        A('s_nop 1')
        A('v_addc_co_u32 v5, vcc, 0, v5, vcc')
        A('global_load_dword v6, v[4:5], off')
    A('K1_warm_x:')
    npf = opt.get('k1pf', 3)
    A(f's_mul_i32 s20, s20, {K1_THREADS//64}')
    A('s_add_u32 s20, s20, s3')
    A(f's_mul_i32 s20, s20, {npf*16384}')
    A('v_lshlrev_b32 v4, 8, v2')
    A('s_waitcnt lgkmcnt(0)')
    srd(A, 24, 4, N*1024)
    for i in range(npf):
        A(f'buffer_load_dword v{8+i}, v4, s[24:27], s20 offen')
        A('s_add_u32 s20, s20, 16384')
    if opt.get('pf_ea'):
        A('s_load_dwordx2 s[6:7], s[0:1], 16')
        A(f's_sub_u32 s20, s2, {K1_PF0}')
        A(f's_mul_i32 s20, s20, {K1_THREADS//64}')
        A('s_add_u32 s20, s20, s3')
        A(f's_mul_i32 s20, s20, {77*128}')
        A('v_lshlrev_b32 v4, 7, v2')
        A('s_waitcnt lgkmcnt(0)')
        srd(A, 28, 6, E*32)
        A('buffer_load_dword v12, v4, s[28:31], s20 offen nt')
        A('s_add_u32 s20, s20, 8192')
        A('s_mov_b64 exec, 0x1fff')
        A('buffer_load_dword v13, v4, s[28:31], s20 offen nt')
    if opt.get('pf_wait'): A('s_waitcnt vmcnt(0)')
    A('K1_end:')
    A('s_endpgm')
    return dict(name=name, vgpr=88, sgpr=48, lds=NB*CELL+1024+256)
```

```python
N = 10000; E = 320000; C = 128
NB = 250; NPB = 40
G1 = 125; G1P = 128; EPW = 2560
CAP = 32; CELL = 384
K1_THREADS = 640
K1_PF0 = G1 + 16 + 4 + 3
PF_PARTS = 1
K1_GRID = K1_PF0 + 8 * PF_PARTS
WS_CELLS = 0
WS_WSI = NB * G1P * CELL
WS_WRAD = WS_WSI + 160 * 1024
WS_USED = WS_WRAD + 40 * 1024
K1_NAME = 'tp_prep_kernel'
K2_NAME = 'standalone__tensor_product_equiv_equiformer__graph_kernel'
WS_STAMP = 16 << 20

EPF = E // NB
F_EPOCH = 0
F_FLAG = 128
F_WSI = 1024
F_L0 = F_WSI + 160 * 1024
F_LVL = NB * NB * 128
F_USED = F_L0 + 3 * F_LVL + 1024
WS_STAMP = 32 << 20
```

```python
from asmlib import *
from common import *

def gen_k1(A, opt):
    name = K1_NAME
    A(f'.globl {name}\n.p2align 8\n.type {name},@function\n{name}:')
    A(f's_cmp_ge_u32 s2, {K1_GRID}')
    A('s_cbranch_scc1 K1_end')
    if opt.get('k1self'):
        A('s_getpc_b64 s[6:7]')
        A('v_lshlrev_b32 v4, 7, v0')
        A('v_mov_b32 v5, s7')
        A('v_add_co_u32 v4, vcc, s6, v4')
        A('s_mov_b64 exec, 0xffffff')
        A('v_addc_co_u32 v5, vcc, 0, v5, vcc')
        A('s_cmp_eq_u32 s2, s2')
        A('global_load_dword v6, v[4:5], off')
        A('s_mov_b64 exec, -1')
    if opt.get('k1pad'):
        for i in range(opt['k1pad'] // 8): A('v_mov_b32 v7, 0x12345678')
    A('s_load_dwordx2 s[4:5], s[0:1], 8')
    A('s_load_dwordx4 s[8:11], s[0:1], 24')
    A('s_load_dwordx4 s[12:15], s[0:1], 40')
    A('s_load_dwordx2 s[16:17], s[0:1], 56')
    A('s_load_dwordx2 s[18:19], s[0:1], 88')
    if opt.get('stamps'):
        A(f's_{opt["stamps"]} s[48:49]')
    A(f's_cmp_ge_u32 s2, {G1}')
    A('s_cbranch_scc1 K1_wprep')
    CNT = NB * CELL
    DUM = CNT + 1024
    A('v_and_b32 v1, 255, v0')
    A('v_lshlrev_b32 v1, 2, v1')
    A('v_mov_b32 v2, 0')
    A(f'v_add_u32 v1, {CNT}, v1')
    A('ds_write_b32 v1, v2')
    A('v_lshlrev_b32 v3, 4, v0')
    A('v_mul_u32_u24 v4, 24, v0')
    A(f's_mul_i32 s3, s2, {EPW*4}')
    A(f's_mul_i32 s20, s2, {EPW*6}')
    A(f's_mul_i32 s21, s2, {EPW}')
    A('s_waitcnt lgkmcnt(0)')
    srd(A, 24, 10, E*4)
    srd(A, 28, 8, E*4)
    srd(A, 32, 4, E*6)
    srd(A, 36, 18, WS_USED)
    A('buffer_load_dwordx4 v[8:11], v3, s[24:27], s3 offen')
    A('buffer_load_dwordx4 v[12:15], v3, s[28:31], s3 offen')
    A('buffer_load_dwordx4 v[16:19], v4, s[32:35], s20 offen')
    A('buffer_load_dwordx2 v[20:21], v4, s[32:35], s20 offen offset:16')
    A('v_lshl_add_u32 v5, v0, 2, s21')
    A('v_mov_b32 v6, 1')
    A('s_mov_b32 s22, 52429')
    A('s_mov_b32 s23, 0x05040100')
    A('s_barrier')
    A('s_waitcnt vmcnt(3)')
    for i in range(4):
        A(f'v_mul_u32_u24 v{22+i}, s22, v{8+i}')
    for i in range(4):
        A(f'v_lshrrev_b32 v{22+i}, 21, v{22+i}')
    for i in range(4):
        A(f'v_min_u32 v{22+i}, {NB-1}, v{22+i}')
    for i in range(4):
        A(f'v_lshlrev_b32 v{34+i}, 2, v{22+i}')
    for i in range(4):
        A(f'v_add_u32 v{34+i}, {CNT}, v{34+i}')
        A(f'ds_add_rtn_u32 v{26+i}, v{34+i}, v6')
    for i in range(4):
        A(f'v_mul_u32_u24 v{30+i}, {NPB}, v{22+i}')
        A(f'v_sub_u32 v{30+i}, v{8+i}, v{30+i}')
        A(f'v_and_b32 v{30+i}, 63, v{30+i}')
        A(f'v_add_u32 v7, {i}, v5')
        A(f'v_lshl_or_b32 v{30+i}, v{30+i}, 19, v7')
        A(f'v_mul_u32_u24 v{22+i}, {CELL}, v{22+i}')
    A('s_waitcnt vmcnt(0)')
    A('v_mov_b32 v40, v16')
    A('v_perm_b32 v41, v12, v17, s23')
    A('v_alignbit_b32 v42, v18, v17, 16')
    A('v_alignbit_b32 v43, v13, v18, 16')
    A('v_mov_b32 v44, v19')
    A('v_perm_b32 v45, v14, v20, s23')
    A('v_alignbit_b32 v46, v21, v20, 16')
    A('v_alignbit_b32 v47, v15, v21, 16')
    for i in range(4): A(f'v_xor_b32 v{41+2*i}, 0x8000, v{41+2*i}')
    A(f'v_mov_b32 v48, {DUM}')
    A('s_waitcnt lgkmcnt(0)')
    for i in range(4):
        A(f'v_cmp_gt_u32 vcc, {CAP}, v{26+i}')
        A(f'v_lshl_add_u32 v{34+i}, v{26+i}, 2, v{22+i}')
        A(f'v_lshl_add_u32 v{8+i}, v{26+i}, 3, v{22+i}')
        A(f'v_cndmask_b32 v{34+i}, v48, v{34+i}, vcc')
        A(f'v_cndmask_b32 v{8+i}, v48, v{8+i}, vcc')
        A(f'ds_write_b32 v{34+i}, v{30+i}')
        A(f'ds_write_b64 v{8+i}, v[{40+2*i}:{41+2*i}] offset:128')
    A('v_lshrrev_b32 v1, 4, v0')
    A('v_and_b32 v2, 15, v0')
    A(f'v_mul_u32_u24 v3, {CELL}, v1')
    A('v_lshl_add_u32 v3, v2, 4, v3')
    A('v_lshlrev_b32 v4, 2, v1')
    A(f'v_add_u32 v4, {CNT}, v4')
    A(f's_mov_b32 s22, {G1P*CELL}')
    A('v_mul_lo_u32 v5, s22, v1')
    A('v_lshl_add_u32 v5, v2, 4, v5')
    A(f's_mul_i32 s3, s2, {CELL}')
    A('v_cmp_eq_u32 s[40:41], 0, v2')
    A('v_cmp_gt_u32 s[46:47], 8, v2')
    A('s_waitcnt lgkmcnt(0)')
    A('s_barrier')
    CPR = K1_THREADS // 16
    NR = (NB + CPR - 1) // CPR
    for r in range(NR):
        off = r * CPR * CELL
        if off + 0 > 65535 - 256:
            if r * CPR * CELL - CPR * CELL <= 65535 - 256:
                A(f'v_add_u32 v49, {off}, v3'); base2 = off
            A(f'ds_read_b128 v[{52+4*r}:{55+4*r}], v49 offset:{off-base2}')
        else:
            A(f'ds_read_b128 v[{52+4*r}:{55+4*r}], v3 offset:{off}')
        A(f'ds_read_b32 v{8+r}, v4 offset:{r*CPR*4}')
    for r in range(NR):
        A(f's_waitcnt lgkmcnt({2*(NR-1-r)})')
        A(f'v_min_u32 v20, 127, v{8+r}')
        A(f'v_and_b32 v21, 0x1ffffff, v{52+4*r}')
        A('v_lshl_or_b32 v21, v20, 25, v21')
        A(f'v_cndmask_b32 v{52+4*r}, v{52+4*r}, v21, s[40:41]')
        last = (r + 1) * CPR > NB
        if last:
            A(f'v_cmp_gt_u32 vcc, {NB - r*CPR}, v1')
            A('s_and_saveexec_b64 s[44:45], vcc')
            A(f's_cbranch_execz K1_skipb{r}')
        A(f'buffer_store_dwordx4 v[{52+4*r}:{55+4*r}], v5, s[36:39], s3 offen {opt.get("k1_st","")}')
        A(f'v_cmp_lt_u32 vcc, 16, v{8+r}')
        A('s_and_b64 vcc, vcc, s[46:47]')
        A('s_and_saveexec_b64 s[44:45], vcc')
        A(f's_cbranch_execz K1_skipb{r}')
        A(f'v_add_u32 v20, {r*CPR*CELL+256}, v3')
        A('ds_read_b128 v[24:27], v20')
        A('s_waitcnt lgkmcnt(0)')
        A(f'buffer_store_dwordx4 v[24:27], v5, s[36:39], s3 offen offset:256 {opt.get("k1_st","")}')
        A('s_nop 1')
        A(f'K1_skipb{r}:')
        A('s_mov_b64 exec, -1')
        A(f's_add_u32 s3, s3, {CPR*G1P*CELL}')
    if opt.get('stamps'):
        A('s_waitcnt vmcnt(0)')
        A(f's_{opt["stamps"]} s[44:45]')
        A('s_waitcnt lgkmcnt(0)')
        A(f's_mov_b32 s38, {WS_STAMP+65536}')
        A('s_lshl_b32 s3, s2, 6')
        A(f's_add_u32 s3, s3, {WS_STAMP}')
        A('v_mov_b32 v0, 0\nv_mov_b32 v2, s48\nv_mov_b32 v3, s44')
        A('buffer_store_dwordx2 v[2:3], v0, s[36:39], s3 offen')
    A('s_endpgm')
    A('K1_wprep:')
    A('v_lshrrev_b32 v1, 6, v0')
    A('v_and_b32 v2, 63, v0')
    A('v_readfirstlane_b32 s3, v1')
    A(f's_sub_u32 s20, s2, {G1}')
    A(f's_mul_i32 s20, s20, {K1_THREADS//64}')
    A('s_add_u32 s20, s20, s3')
    A('s_waitcnt lgkmcnt(0)')
    srd(A, 36, 18, WS_USED)
    srd(A, 24, 14, 256*128*2)
    srd(A, 28, 12, 16*640*2)
    A('v_lshlrev_b32 v3, 4, v2')
    A('s_cmp_ge_u32 s20, 200')
    A('s_cbranch_scc1 K1_warm')
    A('s_cmp_ge_u32 s20, 160')
    A('s_cbranch_scc1 K1_wrad')
    A('s_mul_i32 s21, s20, 3277')
    A('s_lshr_b32 s21, s21, 16')
    A('s_mul_i32 s22, s21, 20')
    A('s_sub_u32 s22, s20, s22')
    A('s_cmp_lt_u32 s22, 8')
    A('s_cbranch_scc1 K1_w0')
    srd(A, 24, 16, 384*128*2)
    A('s_sub_u32 s22, s22, 8')
    A('K1_w0:')
    A('s_lshr_b32 s23, s22, 1')
    A('s_lshl_b32 s23, s23, 6')
    A('s_and_b32 s40, s22, 1')
    A('s_lshl_b32 s40, s40, 4')
    A('s_add_u32 s23, s23, s40')
    A('s_lshl_b32 s23, s23, 8')
    A('s_lshl_b32 s40, s21, 5')
    A('s_add_u32 s23, s23, s40')
    A('s_add_u32 s41, s23, 8192')
    A('v_lshrrev_b32 v4, 4, v2')
    A('v_lshlrev_b32 v4, 10, v4')
    A('v_and_b32 v5, 15, v2')
    A('v_lshl_add_u32 v4, v5, 1, v4')
    for j in range(4):
        A(f'buffer_load_ushort v{8+j}, v4, s[24:27], s23 offen offset:{j*256}')
        A(f'buffer_load_ushort v{12+j}, v4, s[24:27], s41 offen offset:{j*256}')
    A('s_lshl_b32 s40, s20, 10')
    A(f's_add_u32 s40, s40, {WS_WSI}')
    A('s_waitcnt vmcnt(0)')
    for j in range(4):
        A(f'v_lshl_or_b32 v{8+j}, v{12+j}, 16, v{8+j}')
    A('buffer_store_dwordx4 v[8:11], v3, s[36:39], s40 offen')
    A('s_endpgm')
    A('K1_wrad:')
    A('s_sub_u32 s20, s20, 160')
    A('s_cmp_ge_u32 s20, 20')
    A('s_cselect_b32 s21, 1, 0')
    A('s_mul_i32 s22, s21, 20')
    A('s_sub_u32 s22, s20, s22')
    A('s_lshr_b32 s23, s22, 2')
    A('s_lshl_b32 s23, s23, 8')
    A('s_lshl_b32 s40, s21, 7')
    A('s_add_u32 s23, s23, s40')
    A('s_bfe_u32 s40, s22, 0x10001')
    A('s_lshl_b32 s40, s40, 6')
    A('s_add_u32 s23, s23, s40')
    A('s_and_b32 s40, s22, 1')
    A('s_mul_i32 s40, s40, 8*1280')
    A('s_add_u32 s23, s23, s40')
    A('v_lshrrev_b32 v4, 5, v2')
    A('v_mul_u32_u24 v4, 5120, v4')
    A('v_and_b32 v5, 31, v2')
    A('v_lshl_add_u32 v4, v5, 1, v4')
    for j in range(4):
        A(f'buffer_load_ushort v{8+j}, v4, s[28:31], s23 offen offset:{j*1280}')
    A('s_lshl_b32 s40, s20, 10')
    A(f's_add_u32 s40, s40, {WS_WRAD}')
    A('s_waitcnt vmcnt(0)')
    for j in range(4):
        A(f'v_lshlrev_b32 v{8+j}, 16, v{8+j}')
    A('buffer_store_dwordx4 v[8:11], v3, s[36:39], s40 offen')
    A('s_endpgm')
    A('K1_warm:')
    A(f's_cmp_ge_u32 s2, {K1_PF0}')
    A('s_cbranch_scc1 K1_warm2')
    A(f's_sub_u32 s20, s2, {G1 + 20 - G1}')
    A(f's_mul_i32 s20, s20, {CELL}')
    A(f's_mov_b32 s22, {G1P*CELL}')
    A('v_mul_lo_u32 v5, s22, v0')
    A('v_mov_b32 v6, 0')
    A(f'v_cmp_gt_u32 vcc, {NB}, v0')
    A('s_and_saveexec_b64 s[44:45], vcc')
    A('s_cbranch_execz K1_end')
    A('buffer_store_dword v6, v5, s[36:39], s20 offen')
    A('s_endpgm')
    A('K1_warm2:')
    A('s_load_dwordx2 s[4:5], s[0:1], 0')
    A(f's_sub_u32 s20, s2, {K1_PF0}')
    A('s_lshr_b32 s20, s20, 3')
    if opt.get('pf_code', 1):
        A('s_cmp_lg_u32 s20, 0')
        A('s_cbranch_scc1 K1_warm_x')
        A('s_getpc_b64 s[6:7]')
        A('K1_pc:')
        A(f's_add_u32 s6, s6, {K2_NAME}-K1_pc')
        A('s_addc_u32 s7, s7, 0')
        A('v_lshlrev_b32 v4, 7, v0')
        A(f'v_min_u32 v4, K2_last-{K2_NAME}, v4')
        A('v_mov_b32 v5, s7')
        A('v_add_co_u32 v4, vcc, s6, v4')
        A('s_nop 1')
        A('v_addc_co_u32 v5, vcc, 0, v5, vcc')
        A('global_load_dword v6, v[4:5], off')
    A('K1_warm_x:')
    npf = opt.get('k1pf', 3)
    A(f's_mul_i32 s20, s20, {K1_THREADS//64}')
    A('s_add_u32 s20, s20, s3')
    A(f's_mul_i32 s20, s20, {npf*16384}')
    A('v_lshlrev_b32 v4, 8, v2')
    A('s_waitcnt lgkmcnt(0)')
    srd(A, 24, 4, N*1024)
    for i in range(npf):
        A(f'buffer_load_dword v{8+i}, v4, s[24:27], s20 offen')
        A('s_add_u32 s20, s20, 16384')
    if opt.get('pf_ea'):
        A('s_load_dwordx2 s[6:7], s[0:1], 16')
        A(f's_sub_u32 s20, s2, {K1_PF0}')
        A(f's_mul_i32 s20, s20, {K1_THREADS//64}')
        A('s_add_u32 s20, s20, s3')
        A(f's_mul_i32 s20, s20, {77*128}')
        A('v_lshlrev_b32 v4, 7, v2')
        A('s_waitcnt lgkmcnt(0)')
        srd(A, 28, 6, E*32)
        A('buffer_load_dword v12, v4, s[28:31], s20 offen nt')
        A('s_add_u32 s20, s20, 8192')
        A('s_mov_b64 exec, 0x1fff')
        A('buffer_load_dword v13, v4, s[28:31], s20 offen nt')
    if opt.get('pf_wait'): A('s_waitcnt vmcnt(0)')
    A('K1_end:')
    A('s_endpgm')
    return dict(name=name, vgpr=88, sgpr=52, lds=NB*CELL+1024+256)
```

```python
import re
from asmlib import *
from common import *

RING = 0
WR1 = 65536
RAW = WR1 + 20480
LDS_TOTAL = 163840
CNT = LDS_TOTAL - 1024
PGW = CNT + 256
TAB = PGW + 256
DUM = TAB + 384
RAWCAP = CNT - RAW
BCNT = 256 * 384
PROW = 1536
PAT = 0x7f007f00
assert RAW % 128 == 0 and CNT % 256 == 0
GRP = ['A0', 'B0x', 'B0y', 'B0z', 'B1x', 'B1y', 'B1z', 'B2z', 'A1', 'B2x', 'B2y']
HS = (4, 5, 3, 6, 8, 2)

class R: pass
_pl = [0]
OPT = {}

def alloc():
    r = R()
    v = Alloc(0, 256)
    r.ACC = v.get('acc', 64)
    r.AC = v.get('acache', 32)
    r.W = v.get('w', 80)
    r.BF0 = v.get('bf0', 4)
    r.BF1 = v.get('bf1', 16)
    r.CAR = v.get('car', 8)
    r.ST = v.get('stash', 30)
    r.V = v.get('V', 8)
    r.Y = v.get('Y', 2)
    r.B0 = v.get('b0'); r.B1 = v.get('b1')
    r.LO = v.get('laneoff')
    r.SL = v.get('sl'); r.PL = v.get('pl')
    r.EAB = v.get('eab'); r.YB = v.get('yb')
    r.PG = v.get('pg')
    r.T = v.get('t', 4)
    r.PA = r.T + 1
    r.nv = v.p
    s = Alloc(4, 102)
    r.sX = s.get('X', 4, 4); r.sX1 = s.get('X1', 4, 4); r.sEA = s.get('EA', 4, 4); r.sWS = s.get('WS', 4, 4)
    r.sOUT = r.sX
    r.sWave = s.get('wave'); r.sRing = s.get('ring')
    r.sM = s.get('meta', 6); r.sM2 = s.get('meta2', 5)
    r.sPx = s.get('Px'); r.sEaOn = r.sPx
    r.sC = s.get('C', 4)
    r.sPS = s.get('PS', 4)
    r.sA = s.get('A', 4)
    r.sSn = s.get('Sn'); r.sRn = s.get('Rn'); r.sDE = s.get('dE'); r.sDY = s.get('dY')
    r.sIt = s.get('it'); r.sIdx = s.get('idx')
    r.sHn = s.get('Hn'); r.sTog = s.get('tog')
    r.sYm = s.get('ym', 2, 2); r.sXm = s.get('xm', 2, 2)
    r.sTab = s.get('tab', 8)
    r.sT = s.get('t', 6, 2); r.sMn = r.sT + 5
    r.sEx = s.get('ex', 16, 4)
    r.sP = r.sEx
    r.sE0 = r.sEx; r.sE1 = r.sEx + 2; r.sEm0 = r.sEx + 4; r.sEm1 = r.sEx + 5
    r.sBk = 2; r.sCnt = 3
    r.sNon = s.get('nonce'); r.sFl = s.get('flags')
    r.sK1 = 3
    if OPT.get('stamps'):
        r.sStT = r.sT + 2 if False else s.get('stt', 2, 2); r.sSt = s.get('st', 10)
    r.ns = s.p
    return r

def NPW(): return 2 if OPT.get('w2', 1) else 3
def NE0(): return 5 if OPT.get('zt', 1) else 3
ZOFF = 90112
def acc(r, t, blk, i=0): return r.ACC + (blk * 2 + t) * 16 + i
def wreg(r, k, blk, i): return r.W + k * 16 + blk * 8 + i
def ac(r, s, t): return r.AC + s * 8 + t * 4
def bf(r, blk, s): return r.BF0 if blk == 0 else r.BF1 + 4 * s

def lbuild(r, s, half=False):
    o = []
    E_ = ac(r, s, 1); A0 = ac(r, s, 0); Y = r.Y + (s & 1)
    U = [(r.CAR, r.CAR + 1), (r.CAR + 2, r.CAR + 3)]; P = r.CAR + 4
    def unp(j):
        u = U[j & 1]
        o.append(f'v_lshlrev_b32 v{u[0]}, 16, v{E_+j}')
        o.append(f'v_and_b32 v{u[1]}, 0xffff0000, v{E_+j}')
    dpp = lambda d, k, u: f'v_mul_f32_dpp v{d}, v{Y}, v{u} row_newbcast:{k} row_mask:0xf bank_mask:0xf'
    if OPT.get('no_lb'): return []
    if OPT.get('zt', 1):
        for p in range(1 if half else 2):
            for q in range(2):
                j = 2*p + q; u = A0 + 2*p + 4*q; P = r.CAR + 4*q
                o += [dpp(P, 2*j, u), dpp(P+1, 2*j+1, u+1), dpp(P+2, 8+2*j, u), dpp(P+3, 9+2*j, u+1)]
            for q in range(2):
                j = 2*p + q; P = r.CAR + 4*q
                o += [f'v_cvt_pk_bf16_f32 v{A0+j}, v{P}, v{P+1}', f'v_cvt_pk_bf16_f32 v{E_+j}, v{P+2}, v{P+3}']
        return o
    nj = 2 if half else 4
    unp(0); unp(1)
    for j in range(nj):
        u = U[j & 1]
        o.append(dpp(P, 2*j, u[0])); o.append(dpp(P+1, 2*j+1, u[1]))
        o.append(dpp(P+2, 8+2*j, u[0])); o.append(dpp(P+3, 9+2*j, u[1]))
        if j + 2 < nj: unp(j + 2)
        o.append(f'v_cvt_pk_bf16_f32 v{A0+j}, v{P}, v{P+1}')
        o.append(f'v_cvt_pk_bf16_f32 v{E_+j}, v{P+2}, v{P+3}')
    return o

def chain(dst, a0, w0, neg=False, init=True):
    o = []
    for i in range(1 if OPT.get('no_epi') else 8):
        if i == 0 and init:
            o.append(f'v_mul_f32_e64 v{dst}, v{a0}, -v{w0}' if neg else f'v_mul_f32 v{dst}, v{a0}, v{w0}')
        elif neg:
            o.append(f'v_fma_f32 v{dst}, v{a0+i}, -v{w0+i}, v{dst}')
        else:
            o.append(f'v_fmac_f32 v{dst}, v{a0+i}, v{w0+i}')
    return o

def epi(r, b, blk, phase):
    car = lambda j, k=blk: r.CAR + j * 2 + k
    tmp = lambda k=blk: r.T + 2 + k
    swap = lambda x, y: f'v_permlane32_swap_b32 v{x}, v{y}'
    add = lambda x, y: f'v_add_f32 v{y}, v{x}, v{y}'
    a = lambda aa: acc(r, aa >> 1, blk, (aa & 1) * 8)
    w = lambda k: wreg(r, k, blk, 0)
    if b == 0:
        ch = [chain(car(0), a(0), w(0)), chain(car(1), a(1), w(2)), chain(car(2), a(2), w(2)), chain(car(3), a(3), w(2), neg=True)]
    elif b == 1:
        ch = [chain(car(0), a(0), w(3)), chain(car(1), a(1), w(1)), chain(car(2), a(2), w(4), neg=True), chain(car(3), a(3), w(4), neg=True)]
    elif b == 2:
        ch = [chain(tmp(), a(0), w(3)), chain(car(2), a(1), w(4), init=False)]
    else:
        ch = [chain(tmp(), a(0), w(3)), chain(car(3), a(1), w(4), neg=True, init=False),
              chain(car(1), a(2), w(1), init=False), chain(car(0), a(3), w(4))]
    o = []
    if phase == 0 or not OPT.get('pk'):
        if b == 0:
            o = ch[0] + ch[1] + ch[2][:2] + [swap(car(0), car(1))] + ch[2][2:] + [add(car(0), car(1))] + ch[3] + ['s_nop 1', swap(car(2), car(3)), add(car(2), car(3))]
            outs = [(0, lambda k: car(1, k)), (1, lambda k: car(3, k))]
        elif b == 1:
            o = ch[0] + ch[1] + ch[2] + ch[3]; outs = []
        elif b == 2:
            o = ch[0] + ch[1][:2] + [swap(car(0), tmp())] + ch[1][2:] + [add(car(0), tmp())]
            outs = [(2, lambda k: tmp(k))]
        else:
            o = (ch[0] + ch[1][:2] + [swap(tmp(), car(2))] + ch[1][2:] + [add(tmp(), car(2))] + ch[2][:1] + [swap(car(3), tmp())] + ch[2][1:]
                 + [add(car(3), tmp())] + ch[3] + ['s_nop 1', swap(car(1), car(0)), add(car(1), car(0))])
            outs = [(3, lambda k: car(2, k)), (5, lambda k: tmp(k)), (4, lambda k: car(0, k))]
        if blk == 1 and outs:
            if phase == 0:
                o += [f's_set_gpr_idx_on s{r.sIdx}, gpr_idx(DST)', 's_nop 0']
                o += [f'v_cvt_pk_bf16_f32 v{r.ST+wi}, v{f(0)}, v{f(1)}' for wi, f in outs]
                o += ['s_set_gpr_idx_off']
            else:
                o += [f'v_cvt_pk_bf16_f32 v{f(0)}, v{f(0)}, v{f(1)}' for wi, f in outs]
                full = [(wi, f) for wi, f in outs if wi != 5]
                if OPT.get('w2', 1) and len(full) == 2:
                    (w0_, f0), (w1_, f1) = full
                    o += [f'ds_write2st64_b32 v{r.PA}, v{f0(0)}, v{f1(0)} offset0:{w0_} offset1:{w1_}']
                    outs = [x for x in outs if x[0] == 5]
                for wi, f in outs:
                    if wi == 5: o += ['s_mov_b64 exec, 0xffffffff']
                    o += [f'ds_write_b32 v{r.PA}, v{f(0)} offset:{wi*256}']
                    if wi == 5: o += ['s_mov_b64 exec, -1']
        return o
    for c in ch: o += c
    if blk == 1:
        done = {0: [('A0', 0), ('B0x', 1), ('B0y', 2), ('B0z', 3)], 1: [('B1x', 0)], 2: [('B1y', -1), ('B2z', 2)],
                3: [('B1z', -1), ('B2y', 3), ('A1', 1), ('B2x', 0)]}[b]
        reg = lambda j, k: tmp(k) if j < 0 else car(j, k)
        o += [f'v_cvt_pk_bf16_f32 v{reg(j,0)}, v{reg(j,0)}, v{reg(j,1)}' for g, j in done]
        o += ['s_mov_b64 exec, 0xffffffff']
        o += [f'ds_write_b32 v{r.PA}, v{reg(j,0)} offset:{GRP.index(g)*128}' for g, j in done]
        o += ['s_not_b64 exec, exec']
        o += [f'ds_pk_add_bf16 v{r.PA}, v{reg(j,0)} offset:{GRP.index(g)*128}' for g, j in done]
        o += ['s_mov_b64 exec, -1']
    return o

def dma_m0(A, r, slot):
    if OPT.get('no_dma'): return
    A(f's_add_u32 m0, s{r.sRing}, {slot*2048}')

def dma(A, r, vreg, soff, half=False):
    if OPT.get('no_dma'): return 0
    A(f'buffer_load_dwordx4 v{vreg}, s[{r.sX}:{r.sX+3}], s{soff} offen lds')
    if half: return 1
    A(f'buffer_load_dwordx4 v{vreg+1}, s[{r.sX1}:{r.sX1+3}], s{soff} offen offset:1024 lds')
    return 2

def dma2(A, r, vreg, soff):
    if OPT.get('no_dma'): return 0
    A(f'buffer_load_dwordx4 v{vreg+1}, s[{r.sX1}:{r.sX1+3}], s{soff} offen offset:1024 lds')
    return 1

def bread(A, r, slot, s, half=False):
    n = 1 if half else 2
    for blk in range(2):
        for j in range(n):
            A(f'ds_read_b64_tr_b16 v[{bf(r,blk,s)+2*j}:{bf(r,blk,s)+2*j+1}], v{r.B0+blk} offset:{slot*2048+j*1024}')
    return 2 * n

def earead(A, r, s, half=False):
    if OPT.get('zt', 1):
        for q in range(2 if half else 4):
            d = ac(r, s, 0) + (0, 4, 2, 6)[q]
            A(f'ds_read_b64_tr_b16 v[{d}:{d+1}], v{r.EAB} offset:{s*512+(q>>1)*256+(q&1)*64}')
        return 2 if half else 4
    for j in range(1 if half else 2):
        A(f'ds_read_b64_tr_b16 v[{ac(r,s,1)+2*j}:{ac(r,s,1)+2*j+1}], v{r.EAB} offset:{s*512+j*256}')
    return 1 if half else 2

def yread(A, r, s):
    A(f's_mov_b64 exec, s[{r.sYm}:{r.sYm+1}]')
    A(f'ds_read_u16_d16_hi v{r.Y+(s&1)}, v{r.YB} offset:{s*128}')
    A('s_mov_b64 exec, -1')
    return 1

def srcread(A, r, j):
    A(f'v_add_u32 v{r.T}, s{r.sA+j}, v{r.SL}')
    if OPT.get('src2', 0):
        A(f'ds_read2_b32 v[{r.V+2*j}:{r.V+2*j+1}], v{r.T} offset0:0 offset1:16')
        return 1
    A(f'ds_read_u16 v{r.V+2*j}, v{r.T}')
    A(f'ds_read_u16 v{r.V+2*j+1}, v{r.T} offset:64')
    return 2

def srcfix(A, r, j):
    for q in range(2):
        if OPT.get('oob'): A(f'v_mov_b32 v{r.V+2*j+q}, 0x7f000000')
        elif OPT.get('small'):
            A(f'v_and_b32 v{r.V+2*j+q}, {OPT["small"]-1}, v{r.V+2*j+q}')
            A(f'v_lshl_add_u32 v{r.V+2*j+q}, v{r.V+2*j+q}, 10, v{r.LO}')
        elif OPT.get('src2', 0): A(f'v_mad_u32_u16 v{r.V+2*j+q}, v{r.V+2*j+q}, s{r.sK1}, v{r.LO} op_sel:[1,0,0,0]')
        else: A(f'v_lshl_add_u32 v{r.V+2*j+q}, v{r.V+2*j+q}, 10, v{r.LO}')

def eidxread(A, r):
    if OPT.get('kf') >= 'kf6':
        A(f'v_add_u32 v{r.T+1}, s{r.sRn}, v{r.PL}')
        A(f'ds_read_b32 v{r.T+2}, v{r.T+1}')
        A(f'ds_read_b32 v{r.T+3}, v{r.T+1} offset:256')
        return 2
    A(f'v_lshl_add_u32 v{r.T+1}, v{r.PL}, 2, s{r.sRn}')
    A(f'ds_read_b32 v{r.T+2}, v{r.T+1}')
    A(f'ds_read_b32 v{r.T+3}, v{r.T+1} offset:1024')
    return 2

def eadma(A, r):
    for q, (ex, em) in enumerate(((r.sE0, r.sEm0), (r.sE1, r.sEm1))):
        A(f's_mov_b32 m0, s{em}')
        A(f's_mov_b64 exec, s[{ex}:{ex+1}]')
        A(f'buffer_load_dwordx4 v{r.T+2+q}, s[{r.sEA}:{r.sEA+3}], 0 offen {OPT.get("ea_aux","")} lds')
    A('s_mov_b64 exec, -1')
    return 2

def mfma(r, t, blk, s, first, half=False):
    if OPT.get('no_mfma'): return 's_nop 0'
    d = acc(r, t, blk); b = bf(r, blk, s)
    c = '0' if first else f'v[{d}:{d+15}]'
    if half:
        return f'v_mfma_f32_32x32x8_bf16 v[{d}:{d+15}], v[{ac(r,s,t)}:{ac(r,s,t)+1}], v[{b}:{b+1}], {c}'
    return f'v_mfma_f32_32x32x16_bf16 v[{d}:{d+15}], v[{ac(r,s,t)}:{ac(r,s,t)+3}], v[{b}:{b+3}], {c}'

class Q:
    def __init__(self, mx): self.q = []; self.mx = mx
    def add(self, tag, n=1): self.q += [tag] * n
    def need(self, *tags):
        idx = [i for i, t in enumerate(self.q) if t in tags]
        if not idx: return None
        n = len(self.q) - 1 - idx[-1]
        self.q = self.q[idx[-1] + 1:]
        return min(n, self.mx)

def wait(A, vm=None, lg=None, force=False):
    p = []
    if vm is not None and not OPT.get('no_vmw'): p.append(f'vmcnt({vm})')
    if lg is not None and not OPT.get('no_lgkm'): p.append(f'lgkmcnt({lg})')
    if p: A('s_waitcnt ' + ' '.join(p))
    elif force: A('s_nop 0')

def split(ops, n):
    units = []; cur = None
    for o in ops:
        opens = o.startswith('s_set_gpr_idx_on') or (o.startswith('s_mov_b64 exec') and not o.endswith('-1'))
        closes = o.startswith('s_set_gpr_idx_off') or o == 's_mov_b64 exec, -1'
        if cur is None and opens: cur = [o]
        elif cur is not None:
            cur.append(o)
            if closes: units.append(cur); cur = None
        else: units.append([o])
    tot = sum(len(u) for u in units); out = [[] for _ in range(n)]; k = 0; done = 0
    for u in units:
        while k < n - 1 and done >= (k + 1) * tot / n: k += 1
        out[k] += u; done += len(u)
    return out

def item(A, r, H, phase, opt):
    S = (H + 1) // 2
    ishalf = lambda s: bool(H & 1) and s == S - 1
    A(f'ITEM_{phase}_{H}:')
    lg = Q(15); vm = Q(63)
    lg.add('B0', 4); lg.add('E0', NE0())
    for c in (1, 2, 3): vm.add(f'C{c}', 2)
    n = 4 * S
    def emit(ops):
        for o in ops:
            A(o)
            if o.startswith('ds_'): lg.add('P')
    if S > 1: lg.add('Y1', yread(A, r, 1))
    for s in range(1, S): lg.add(f'E{s}', earead(A, r, s, ishalf(s)))
    vfree = {j: (3*S + j - 4 if (j < S and 3*S + j >= 4) else -1) for j in range(4)}
    info = nextinfo(r, phase)
    if phase == 1:
        info[1:2] = []
        info[1:1] = [f'v_mov_b32 v{r.PA}, v{r.PL}'] if False else ['s_nop 0']
        info[3:3] = [f's_movrels_b32 s{r.sPx}, s{r.sM2}', f's_and_b32 s{r.sT+4}, s{r.sPx}, 0x70', f's_andn2_b32 s{r.sPx}, s{r.sPx}, 0x70',
                     f'v_xor_b32 v{r.PA}, s{r.sT+4}, v{r.PL}', f'v_add_u32 v{r.PA}, s{r.sPx}, v{r.PA}']
    def put_info():
        for o in info: A(o)
        for j in range(4):
            if vfree[j] < 0: lg.add(f'V{j}', srcread(A, r, j))
    if S == 1: put_info()
    wait(A, lg=lg.need('E0'))
    for o in lbuild(r, 0, ishalf(0)): A(o)
    if S > 2: lg.add('Y2', yread(A, r, 2))
    else: A('s_nop 0')
    def xorv3(steps):
        A(f's_mov_b64 exec, s[{r.sXm}:{r.sXm+1}]')
        for s in steps:
            for j in range(2 if ishalf(s) else 4):
                A(f'v_xor_b32 v{ac(r,s,1)+j}, 0x80008000, v{ac(r,s,1)+j}')
        A('s_mov_b64 exec, -1')
    for k in range(8):
        b, blk = k >> 1, k & 1
        if k == 0:
            fills = []
            for s in range(S):
                fills += split(lbuild(r, s + 1, ishalf(s + 1)), 2) if s + 1 < S else [[], []]
        else:
            fills = split(epi(r, (k - 1) >> 1, (k - 1) & 1, phase), 2 * S)
        if OPT.get('kprio') and k == OPT['kprio'][0]: A(f's_setprio {OPT["kprio"][1]}')
        started = False
        def fill(i):
            nonlocal started
            if k > 0 and fills[i] and not started:
                A.pad_since_mfma(acc(r, 0, (k - 1) & 1), 12); started = True
            emit(fills[i])
        for s in range(S):
            g = b * S + s; hf = ishalf(s)
            if blk == 0:
                tags = [f'B{g}']
                if k == 0 and s + 1 < S: tags += [f'E{s+1}', f'Y{s+1}']
                if g + 4 >= n: tags.append(f'V{g+4-n}')
                if k == 6 and s == S - 1 and (S == 1 or s > 0): tags.append(f'Z{s}')
                wait(A, vm=vm.need(f'C{g+1}') if s + 1 < S else None, lg=lg.need(*tags))
                if k == 6 and s == S - 1:
                    xorv3([s])
                    if S == 1: A('s_nop 0')
            spread = OPT.get('spread', 0)
            cn = g + 4
            if cn < n: bn, sn = divmod(cn, S); dv, dso, dh = r.V + 2*sn, r.sC + bn, ishalf(sn)
            else: dv, dso, dh = r.V + 2*(cn - n), r.sPS + (cn - n), False
            late = spread == 2 and b < 3 and (cn < n or S <= 2)
            if blk == 0 and spread:
                dma_m0(A, r, g % 4)
                if cn >= n: srcfix(A, r, cn - n)
            if blk == 1 and late and not dh: dma_m0(A, r, g % 4)
            A(mfma(r, 0, blk, s, s == 0, hf))
            if blk == 0 and spread: vm.add(f'C{cn}', dma(A, r, dv, dso, True))
            if blk == 1 and late and not dh: vm.add(f'C{cn}', dma2(A, r, dv, dso))
            fill(2 * s)
            if blk == 0 and (not spread or (not dh and not late and any('gpr_idx' in o for o in fills[2*s]))): dma_m0(A, r, g % 4)
            A(mfma(r, 1, blk, s, s == 0 and b != 3, hf))
            if blk == 0:
                if spread:
                    if not dh and not late: vm.add(f'C{cn}', dma2(A, r, dv, dso))
                else:
                    if cn >= n: srcfix(A, r, cn - n)
                    vm.add(f'C{cn}', dma(A, r, dv, dso, dh))
                if s + 1 < S: lg.add(f'B{g+1}', bread(A, r, (g + 1) % 4, s + 1, ishalf(s + 1)))
                for j in range(4):
                    if vfree[j] == g and not (late and not dh): lg.add(f'V{j}', srcread(A, r, j))
                if k == 2 and s == 0 and phase == 0:
                    wait(A, lg=lg.need('X'))
                    vm.add('EA', eadma(A, r))
            else:
                for j in range(4):
                    if vfree[j] == g and late and not dh: lg.add(f'V{j}', srcread(A, r, j))
                if k == 5:
                    for j in range(2 if hf else 4):
                        A(f'ds_swizzle_b32 v{ac(r,s,1)+j}, v{ac(r,s,1)+j} offset:0x401F')
                        lg.add(f'Z{s}')
                if k == 1 and s == 0 and phase == 0: lg.add('X', eidxread(A, r))
                if s == max(S - 2, 0):
                    gn = (b + 1) * S
                    wait(A, vm=vm.need(f'C{gn}', *(['EA'] if k == 7 else [])))
                    lg.add(f'B{gn}', bread(A, r, gn % 4, 0, ishalf(0) and gn < n))
                if k == 7 and s == S - 1:
                    A(f'v_add_u32 v{r.EAB}, s{r.sDE}, v{r.EAB}')
                    A(f'v_add_u32 v{r.YB}, s{r.sDY}, v{r.YB}')
                    if OPT.get('fair'): A(f'ds_read_b32 v{r.T}, v{r.PG} offset:16')
                    earead(A, r, 0); yread(A, r, 0)
            fill(2 * s + 1)
            if k == 0 and s == S - 1 and S > 1: put_info()
            if k == 0 and s + 1 < S:
                if s + 3 < S: lg.add(f'Y{s+3}', yread(A, r, s + 3))
                else: A('s_nop 0')
            if k == 5 and s == S - 1 and S > 1:
                wait(A, lg=lg.need(*[f'Z{x}' for x in range(S - 1)]))
                xorv3(range(S - 1))
        if blk == 1: stamp(A, r, opt, 'sub')
    if OPT.get('endprio') is not None: A(f's_setprio {OPT["endprio"]}')
    A.pad_since_mfma(acc(r, 0, 1), 12)
    emit(epi(r, 3, 1, phase))
    stamp(A, r, opt, 'item')
    A(f's_add_u32 s{r.sIt}, s{r.sIt}, 1')
    if phase == 0: A(f's_add_u32 s{r.sIdx}, s{r.sIdx}, 6')
    last1 = OPT.get('last1', 1)
    A(f's_cmp_ge_u32 s{r.sIt}, {4 if last1 else 4 + phase}')
    A('s_cbranch_scc1 ' + ('LAST0' if phase == 0 else 'LAST1' if last1 else 'TAIL'))
    dispatch(A, r, phase, NE0() + NPW() * phase)

def nextinfo(r, phase, first=False):
    t = r.sT; o = []
    if not first:
        o += [f's_mov_b32 m0, s{r.sIt}', 's_nop 0', f's_movrels_b32 s{r.sMn}, s{r.sM+1}']
    o += [f's_bfe_u32 s{r.sSn}, s{r.sMn}, 0x30012',
          f's_mov_b32 m0, s{r.sSn}',
          f's_and_b32 s{t}, s{r.sMn}, 0x3ffff',
          f's_movrels_b32 s{t+2}, s{r.sTab-1}',
          f's_movrels_b32 s{t+3}, s{r.sTab+3}',
          f's_sub_u32 s{r.sDE}, s{t}, s{r.sRn}',
          f's_mov_b32 s{r.sRn}, s{t}',
          f's_lshr_b32 s{r.sHn}, s{r.sMn}, 28',
          f's_lshl_b32 s{t+1}, s{r.sSn}, 9',
          f's_add_u32 s{t}, s{t}, s{t+1}',
          f's_sub_u32 s{r.sDY}, s{t}, s{r.sA}',
          f's_mov_b32 s{r.sA}, s{t}']
    for j in range(1, 4):
        o += [f's_bfe_u32 s{t}, s{t+2}, {(10 << 16) | ((j-1)*10)}',
              f's_add_u32 s{r.sA+j}, s{r.sA}, s{t}',
              f's_bfe_u32 s{r.sPS+j}, s{t+3}, {(10 << 16) | ((j-1)*10)}']
    if phase == 0:
        o += [f's_and_b32 s{t}, s{r.sSn}, s{r.sEaOn}',
              f's_cselect_b32 s{r.sE0}, -1, 1',
              f's_cselect_b32 s{r.sEm0}, s{r.sRn}, {DUM}',
              f's_cmp_ge_u32 s{t}, 2',
              f's_cselect_b32 s{r.sE0+1}, -1, 0',
              f's_add_u32 s{r.sEm1}, s{r.sRn}, 1024',
              f's_cmp_ge_u32 s{t}, 4',
              f's_cselect_b32 s{r.sE1+1}, -1, 0',
              f's_cmp_ge_u32 s{t}, 3',
              f's_cselect_b32 s{r.sE1}, -1, 1',
              f's_cselect_b32 s{r.sEm1}, s{r.sEm1}, {DUM}']
    return o

def tables():
    offs = []; comps = []
    for S in range(1, 5):
        offs.append(sum(((j % S) * 128) << (10 * (j - 1)) for j in range(1, 4)))
        comps.append(sum(((j // S) * 256 + 128) << (10 * (j - 1)) for j in range(1, 4)))
    return offs + comps

def dispatch(A, r, phase, lgk):
    if OPT.get('fair'):
        _pl[0] += 1
        A(f's_waitcnt lgkmcnt({lgk})')
        A(f'v_readfirstlane_b32 s{r.sT}, v{r.T}')
        A(f's_add_u32 s{r.sTog}, s{r.sTog}, 1')
        A(f'v_mov_b32 v{r.T}, s{r.sTog}')
        A(f's_cmp_le_u32 s{r.sTog}, s{r.sT}')
        A(f'ds_write2_b32 v{r.PG}, v{r.T}, v{r.T} offset0:0 offset1:8')
        A('s_setprio 1')
        A(f's_cbranch_scc1 PRIO_{_pl[0]}')
        A('s_setprio 0')
        A(f'PRIO_{_pl[0]}:')
    for H in HS[:-1]:
        A(f's_cmp_eq_u32 s{r.sHn}, {H}')
        A(f's_cbranch_scc1 ITEM_{phase}_{H}')
    A(f's_branch ITEM_{phase}_{HS[-1]}')

DEFPTS = ['start','B1','B2','B3','item0','phase1','tail','B4','gemm','end']
def stamp(A, r, opt, k):
    if not opt.get('stamps'): return
    if isinstance(k, int): k = DEFPTS[k]
    pts = opt.get('pts', DEFPTS)
    if opt.get('items') or opt.get('sub'): pts = ['item0']
    if k in ('sub', 'item'):
        if not opt.get('sub' if k == 'sub' else 'items'): return
        _pl[0] += 1
        A(f's_add_u32 s{r.sCnt}, s{r.sCnt}, 1')
        A(f's_cmp_gt_u32 s{r.sCnt}, {opt.get("sub", 1)+8}')
        A(f's_cbranch_scc1 SUBST_{_pl[0]}')
        A(f's_{opt["stamps"]} s[{r.sStT}:{r.sStT+1}]')
        for i in range(1, 9): A(f's_mov_b32 s{r.sSt+i}, s{r.sSt+i+1}')
        A('s_waitcnt lgkmcnt(0)')
        A(f's_mov_b32 s{r.sSt+9}, s{r.sStT}')
        A(f'SUBST_{_pl[0]}:')
        return
    if k not in pts: return
    A(f's_{opt["stamps"]} s[{r.sStT}:{r.sStT+1}]')
    A('s_waitcnt lgkmcnt(0)')
    A(f's_mov_b32 s{r.sSt+pts.index(k)}, s{r.sStT}')

def stamp_out(A, r, opt):
    if not opt.get('stamps'): return
    t = r.sT
    A(f's_lshl_b32 s{t}, s{r.sBk}, 3')
    A(f's_add_u32 s{t}, s{t}, s{r.sWave}')
    A(f's_lshl_b32 s{t}, s{t}, 6')
    A(f's_add_u32 s{t}, s{t}, {WS_STAMP + 65536}')
    A(f's_mov_b32 s{r.sWS+2}, {WS_STAMP + 65536 + 2048*64}')
    A('v_mov_b32 v0, 0')
    for k in range(10):
        A(f'v_mov_b32 v1, s{r.sSt+k}')
        A(f'buffer_store_dword v1, v0, s[{r.sWS}:{r.sWS+3}], s{t} offen offset:{4*k}')

def startup(A, r, opt):
    t = r.sT
    A(f's_load_dwordx2 s[{r.sP}:{r.sP+1}], s[0:1], 0')
    A(f's_load_dwordx2 s[{r.sP+2}:{r.sP+3}], s[0:1], 16')
    A(f's_load_dwordx2 s[{r.sP+6}:{r.sP+7}], s[0:1], 88')
    stamp(A, r, opt, 0)
    L = 1; W0 = 8; YS = 16; RK = 32; INF = 40; X0 = 48; IDX = 52; MX = 53; CT = 54
    A(f'v_lshrrev_b32 v2, 6, v0')
    A(f'v_and_b32 v{L}, 63, v0')
    A(f'v_readfirstlane_b32 s{r.sWave}, v2')
    A(f'v_lshrrev_b32 v2, 5, v{L}')
    A(f'v_mul_u32_u24 v2, {CELL}, v2')
    A(f'v_and_b32 v{IDX}, 31, v{L}')
    A(f'v_lshl_add_u32 v{X0}, v{IDX}, 2, v2')
    A(f'v_lshl_add_u32 v{X0+1}, v{IDX}, 3, v2')
    A(f'v_lshlrev_b32 v{X0+2}, 4, v{L}')
    A(f's_mul_i32 s{t}, s2, {G1P*CELL}')
    A(f's_mul_i32 s{t+1}, s{r.sWave}, {16*CELL}')
    A(f's_add_u32 s{t}, s{t}, s{t+1}')
    A(f's_add_u32 s{t+1}, s{t}, {4*2*CELL}')
    A(f's_lshl_b32 s{r.sRing}, s{r.sWave}, 13')
    A(f'v_lshlrev_b32 v{r.PL}, 2, v{L}')
    A(f'v_mov_b32 v{MX}, 0')
    A(f'v_add_u32 v{CT}, {CNT}, v{r.PL}')
    A(f'ds_write_b32 v{CT}, v{MX}')
    A(f'ds_write_b32 v{CT}, v{MX} offset:256')
    A(f's_mov_b32 s{r.sXm}, 0xffff')
    A(f's_mov_b32 s{r.sXm+1}, 0xffff')
    A('s_waitcnt lgkmcnt(0)')
    stamp(A, r, opt, 'karg')
    srd(A, r.sWS, r.sP+6, WS_USED)
    for i in range(8):
        so = t if i < 4 else t + 1
        A(f'buffer_load_dword v{W0+i}, v{X0}, s[{r.sWS}:{r.sWS+3}], s{so} offen offset:{(i%4)*2*CELL}')
    A(f's_mov_b64 exec, s[{r.sXm}:{r.sXm+1}]')
    for i in range(8):
        so = t if i < 4 else t + 1
        A(f'buffer_load_dwordx2 v[{YS+2*i}:{YS+2*i+1}], v{X0+1}, s[{r.sWS}:{r.sWS+3}], s{so} offen offset:{(i%4)*2*CELL+128}')
    A('s_mov_b64 exec, -1')
    A('s_barrier')
    stamp(A, r, opt, 1)
    A(f's_mul_i32 s{t+2}, s{r.sWave}, 5120')
    A(f's_add_u32 s{t+3}, s{t+2}, {WS_WRAD}')
    A(f's_cmp_ge_u32 s{r.sWave}, 4')
    A(f's_cselect_b32 s{t+4}, {WR1-20480}, 0')
    A(f's_add_u32 s{t+2}, s{t+2}, s{t+4}')
    for i in range(5):
        A(f's_add_u32 m0, s{t+2}, {i*1024}')
        A(f's_add_u32 s{t+4}, s{t+3}, {i*1024}')
        A(f'buffer_load_dwordx4 v{X0+2}, s[{r.sWS}:{r.sWS+3}], s{t+4} offen lds')
    stamp(A, r, opt, 'loads')
    A(f's_sub_u32 s{r.sP}, s{r.sP}, 128')
    A(f's_subb_u32 s{r.sP+1}, s{r.sP+1}, 0')
    srd(A, r.sX, r.sP, N*1024)
    A(f's_sub_u32 s{r.sP}, s{r.sP}, 1024')
    A(f's_subb_u32 s{r.sP+1}, s{r.sP+1}, 0')
    srd(A, r.sX1, r.sP, N*1024 + 1024)
    srd(A, r.sEA, r.sP+2, E*32)
    for i in range(4): A(f'v_mov_b32 v{4+i}, {PAT}')
    A(f'v_lshlrev_b32 v2, 4, v0')
    A(f'v_add_u32 v3, {RAW}, v2')
    nfull = RAWCAP // 8192
    for i in range(nfull):
        if i == 8: A('v_add_u32 v3, 0x10000, v3')
        A(f'ds_write_b128 v3, v[4:7] offset:{(i % 8)*8192}')
    rem = RAWCAP - nfull * 8192
    if rem:
        A(f'v_min_u32 v2, {rem-16}, v2')
        A(f'v_add_u32 v2, {RAW + nfull*8192}, v2')
        A('ds_write_b128 v2, v[4:7]')
    stamp(A, r, opt, 'prefill')
    A(f'v_lshrrev_b32 v2, 5, v{L}')
    A(f'v_bfe_u32 v3, v{L}, 2, 2')
    A(f'v_and_b32 v4, 3, v{L}')
    A(f'v_bfe_u32 v5, v{L}, 4, 1')
    A(f'v_lshlrev_b32 v6, 9, v2')
    A(f'v_lshl_add_u32 v6, v3, 7, v6')
    A(f'v_lshl_add_u32 v6, v5, 5, v6')
    A(f'v_lshl_add_u32 v6, v4, 3, v6')
    A(f'v_lshrrev_b32 v7, 1, v3')
    A(f'v_lshl_add_u32 v6, v7, 6, v6')
    A(f'v_add_u32 v{r.B0}, s{r.sRing}, v6')
    A(f'v_xor_b32 v{r.B1}, 64, v{r.B0}')
    A(f'v_lshlrev_b32 v6, 7, v2')
    A(f'v_lshl_add_u32 v6, v3, 5, v6')
    A(f'v_lshl_add_u32 v{r.EAB}, v4, 3, v6')
    A(f'v_lshl_add_u32 v6, v2, 2, v4')
    A(f'v_bfe_u32 v7, v{L}, 2, 1')
    A(f'v_lshl_add_u32 v6, v7, 3, v6')
    A(f'v_lshlrev_b32 v6, 3, v6')
    A(f'v_bfe_u32 v7, v{L}, 3, 1')
    A(f'v_add_u32 v5, 1, v5')
    A(f'v_mul_u32_u24 v7, v7, v5')
    A(f'v_lshl_add_u32 v{r.YB}, v7, 1, v6')
    A(f'v_and_b32 v6, 0x38, v{L}')
    A(f'v_add_u32 v{r.SL}, 6, v6')
    A(f'v_lshrrev_b32 v6, 2, v{L}')
    A(f'v_lshrrev_b32 v7, 4, v{L}')
    A(f'v_xor_b32 v6, v6, v7')
    A(f'v_and_b32 v6, 1, v6')
    A(f'v_lshlrev_b32 v6, 6, v6')
    A(f'v_lshl_add_u32 v{r.LO}, v4, 4, v6')
    for i in range(2): A(f'v_mov_b32 v{r.Y+i}, 1.0')
    A(f's_mov_b32 s{r.sYm}, 0xffffff00')
    A(f's_mov_b32 s{r.sYm+1}, 0xffffff00')
    for i, w in enumerate(tables()): A(f's_mov_b32 s{r.sTab+i}, {w}')
    A(f's_mov_b32 s{r.sPS}, 128')
    A(f's_mov_b32 s{r.sEaOn}, -1')
    A(f's_and_b32 s{t+2}, s{r.sWave}, 3')
    A(f's_lshl_b32 s{t+2}, s{t+2}, 2')
    A(f's_lshr_b32 s{t+3}, s{r.sWave}, 2')
    A(f's_add_u32 s{t+2}, s{t+2}, s{t+3}')
    A(f's_lshl_b32 s{t+2}, s{t+2}, 4')
    A(f's_add_u32 s{t+2}, s{t+2}, {PGW}')
    A(f'v_mov_b32 v{r.PG}, s{t+2}')
    for x in (r.sTog, r.sIt, r.sIdx, r.sRn, r.sA, r.sCnt): A(f's_mov_b32 s{x}, 0')
    for b in range(4): A(f's_mov_b32 s{r.sC+b}, {b*256+128}')
    A(f's_mov_b32 s{t+5}, {CNT}')
    A(f'v_mov_b32 v3, 1')
    for i in range(8):
        A(f's_waitcnt vmcnt({7-i+8+5})')
        if i == 0: stamp(A, r, opt, 'cell0')
        A(f'v_mov_b32_dpp v2, v{W0+i} row_newbcast:0 row_mask:0xf bank_mask:0xf')
        A(f'v_bfe_u32 v{INF+i}, v{W0+i}, 19, 6')
        A(f'v_lshl_add_u32 v{INF+i}, v{INF+i}, 2, s{t+5}')
        A(f'v_mov_b32_dpp v2, v2 row_bcast:15 row_mask:0xa bank_mask:0xf')
        A(f'v_lshrrev_b32 v2, 25, v2')
        A(f'v_cmp_lt_u32 s[{r.sEx+2*i}:{r.sEx+2*i+1}], v{IDX}, v2')
        A(f'v_max_u32 v{MX}, v{MX}, v2')
        A(f's_mov_b64 exec, s[{r.sEx+2*i}:{r.sEx+2*i+1}]')
        A(f'ds_add_rtn_u32 v{RK+i}, v{INF+i}, v3')
        A('s_mov_b64 exec, -1')
    A('s_waitcnt vmcnt(0)')
    A(f'v_cmp_lt_u32 vcc, 16, v{MX}')
    A('s_cmp_eq_u64 vcc, 0')
    A('s_cbranch_scc1 NO_UPPER')
    for i in range(8):
        so = t if i < 4 else t + 1
        A(f's_andn2_b64 exec, s[{r.sEx+2*i}:{r.sEx+2*i+1}], s[{r.sXm}:{r.sXm+1}]')
        A(f's_cbranch_execz NO_UP{i}')
        A(f'buffer_load_dwordx2 v[{YS+2*i}:{YS+2*i+1}], v{X0+1}, s[{r.sWS}:{r.sWS+3}], s{so} offen offset:{(i%4)*2*CELL+128}')
        A(f'NO_UP{i}:')
    A('s_mov_b64 exec, -1')
    A('NO_UPPER:')
    A(f'v_cmp_lt_u32 vcc, {CAP}, v{MX}')
    A(f'v_mov_b32 v2, {CNT+63*4}')
    A(f'v_mov_b32 v4, 1000')
    A('s_mov_b64 exec, vcc')
    A('ds_write_b32 v2, v4')
    A('s_mov_b64 exec, -1')
    stamp(A, r, opt, 'hist')
    A(f's_waitcnt lgkmcnt(0)')
    A('s_barrier')
    stamp(A, r, opt, 2)
    A(f'ds_read_b32 v4, v{CT}')
    for i in range(20):
        A(f'ds_read_b128 v[{r.W+4*i}:{r.W+4*i+3}], v{X0+2} offset:{RING+i*1024}')
    A(f'v_cmp_gt_u32 s[{t+2}:{t+3}], {NPB}, v{L}')
    A('s_waitcnt lgkmcnt(15)')
    A(f'v_cmp_lt_u32 vcc, 64, v4')
    A(f'v_add_u32 v5, 15, v4')
    A(f'v_lshrrev_b32 v5, 4, v5')
    A(f'v_med3_u32 v5, v5, 1, 4')
    A(f'v_mul_u32_u24 v6, 640, v5')
    A(f'v_max_u32 v6, {PROW}, v6')
    A(f'v_cndmask_b32 v6, 0, v6, s[{t+2}:{t+3}]')
    A(f's_cmp_lg_u64 vcc, 0')
    A('s_cbranch_scc1 SLOW')
    A(f'v_mov_b32 v7, v6')
    fillers = [f'v_add_u32 v2, 7, v4', f'v_lshrrev_b32 v2, 3, v2', f'v_max_u32 v2, 2, v2', f'v_cmp_eq_u32 vcc, 7, v2',
               f'v_lshlrev_b32 v5, 18, v5', f'v_lshl_or_b32 v5, v{L}, 21, v5', f'v_addc_co_u32 v2, vcc, 0, v2, vcc',
               f'v_lshl_or_b32 v5, v2, 28, v5', f'v_med3_u32 v2, v2, 3, 6', f'v_cndmask_b32 v2, 0, v2, s[{t+2}:{t+3}]',
               f'v_mov_b32 v{X0}, 63', f's_mov_b32 s{t+4}, 0']
    for i, d in enumerate(['row_shr:1 row_mask:0xf', 'row_shr:2 row_mask:0xf', 'row_shr:4 row_mask:0xf', 'row_shr:8 row_mask:0xf',
                           'row_bcast:15 row_mask:0xa', 'row_bcast:31 row_mask:0xc']):
        A(fillers[2*i]); A(fillers[2*i+1])
        A(f'v_add_u32_dpp v7, v7, v7 {d} bank_mask:0xf')
    A(f'v_cmp_eq_u32 vcc, 6, v2')
    A(f'v_readlane_b32 s{t}, v7, 63')
    A(f'v_sub_u32 v7, v7, v6')
    A(f'v_add_u32 v7, {RAW}, v7')
    A(f'v_or_b32 v6, v5, v7')
    A(f's_cmp_gt_u32 s{t}, {RAWCAP}')
    A('s_cbranch_scc1 SLOW')
    for i in range(8):
        A(f'ds_bpermute_b32 v{INF+i}, v{INF+i}, v6')
    for cl in (6, 5, 4, 3):
        A(f'v_mbcnt_lo_u32_b32 v5, vcc_lo, 0')
        A(f'v_mbcnt_hi_u32_b32 v5, vcc_hi, v5')
        A(f'v_add_u32 v5, s{t+4}, v5')
        A(f'v_cndmask_b32 v{X0}, v{X0}, v5, vcc')
        if cl > 3:
            A(f's_bcnt1_i32_b64 s{t+5}, vcc')
            A(f'v_cmp_eq_u32 vcc, {cl-1}, v2')
            A(f's_add_u32 s{t+4}, s{t+4}, s{t+5}')
            A('s_nop 0')
    A(f'v_lshrrev_b32 v2, 3, v{X0}')
    A(f'v_and_b32 v3, 1, v2')
    A(f'v_mul_u32_u24 v3, 7, v3')
    A(f'v_xor_b32 v{X0}, v{X0}, v3')
    A(f'v_and_b32 v3, 7, v{X0}')
    A(f'v_lshlrev_b32 v3, 13, v3')
    A(f'v_mul_u32_u24 v2, {PROW}, v2')
    A(f'v_lshlrev_b32 v4, 4, v{L}')
    A(f'v_and_b32 v5, 128, v4')
    A(f'v_add3_u32 v2, v2, v3, v5')
    A(f'v_xor_b32 v3, v4, v7')
    A(f'v_and_b32 v3, 128, v3')
    A(f'v_add_u32 v3, v3, v7')
    A(f'v_and_b32 v4, 0x70, v4')
    A(f'v_or_b32 v5, v3, v4')
    for rr in range(5):
        A(f's_add_u32 s{t}, s{r.sWave}, {rr*8}')
        A(f'v_cmp_eq_u32 vcc, s{t}, v{X0}')
        A(f's_ff1_i32_b64 s{t+1}, vcc')
        A(f'v_readlane_b32 s{r.sM+rr}, v6, s{t+1}')
        A(f'v_readlane_b32 s{r.sM2+rr}, v5, s{t+1}')
    A(f'v_lshlrev_b32 v4, 3, v{L}')
    A(f'v_add_u32 v4, {TAB}, v4')
    A(f's_mov_b32 exec_hi, 0xff')
    A('ds_write_b64 v4, v[2:3]')
    A(f's_mov_b32 exec_hi, -1')
    A(f's_mov_b32 s{r.sM+5}, s{r.sM}')
    A(f's_mov_b32 s{r.sMn}, s{r.sM}')
    stamp(A, r, opt, 'meta')
    A('s_waitcnt vmcnt(0) lgkmcnt(0)')
    for i in range(8):
        A(f'v_and_b32 v2, 0x3ffff, v{INF+i}')
        A(f'v_bfe_u32 v3, v{INF+i}, 18, 3')
        A(f'v_lshlrev_b32 v4, 5, v{W0+i}')
        A(f'v_lshl_add_u32 v3, v3, 9, v2')
        A(f'v_and_b32 v4, 0xffffe0, v4')
        A(f'v_lshl_add_u32 v2, v{RK+i}, 5, v2')
        A(f'v_lshl_add_u32 v3, v{RK+i}, 3, v3')
        A(f'v_or_b32 v5, 16, v4')
        A(f's_mov_b64 exec, s[{r.sEx+2*i}:{r.sEx+2*i+1}]')
        A(f'ds_write2_b32 v2, v4, v5 offset0:0 offset1:4')
        A(f'ds_write_b64 v3, v[{YS+2*i}:{YS+2*i+1}]')
        A('s_mov_b64 exec, -1')
    for o in nextinfo(r, 0, first=True): A(o)
    A('s_waitcnt lgkmcnt(0)')
    A('s_barrier')
    stamp(A, r, opt, 3)
    eidxread(A, r)
    for j in range(4): srcread(A, r, j)
    A(f'v_add_u32 v{r.EAB}, s{r.sDE}, v{r.EAB}')
    A(f'v_add_u32 v{r.YB}, s{r.sDY}, v{r.YB}')
    A('s_waitcnt lgkmcnt(8)')
    eadma(A, r)
    A('s_waitcnt lgkmcnt(0)')
    for j in range(4):
        dma_m0(A, r, j)
        srcfix(A, r, j)
        dma(A, r, r.V + 2*j, r.sPS + j)
    stamp(A, r, opt, 'dma0')
    A(f'v_mov_b32 v{r.T}, 0')
    A('s_waitcnt vmcnt(6)')
    stamp(A, r, opt, 4)
    bread(A, r, 0, 0)
    earead(A, r, 0); yread(A, r, 0)
    dispatch(A, r, 0, NE0())

def between(A, r, opt):
    t = r.sT
    A('LAST0:')
    A(f's_cmp_eq_u32 s{r.sIt}, 5')
    A('s_cbranch_scc1 TO_PHASE1')
    for x in (r.sX, r.sX1):
        A(f's_add_u32 s{x}, s{x}, 128')
        A(f's_addc_u32 s{x+1}, s{x+1}, 0')
    for b in range(4): A(f's_mov_b32 s{r.sC+b}, {b*256}')
    A(f's_mov_b32 s{r.sEaOn}, 0')
    pf1 = OPT.get('pf1')
    if pf1:
        if pf1 == 'chip':
            A(f's_lshl_b32 s{t}, s2, 3')
            A(f's_add_u32 s{t}, s{t}, s{r.sWave}')
            A(f's_mul_i32 s{t}, s{t}, {20*256}')
            A(f'v_lshlrev_b32 v{r.T+1}, 6, v{r.PL}')
            A(f's_mov_b64 exec, {(1 << 20) - 1}')
        else:
            A(f's_lshr_b32 s{t}, s2, 3')
            A(f's_lshl_b32 s{t}, s{t}, 3')
            A(f's_add_u32 s{t}, s{t}, s{r.sWave}')
            A(f's_mul_i32 s{t}, s{t}, {pf1*1024}')
            A(f'v_lshlrev_b32 v{r.T+1}, 8, v{r.PL}')
            A(f's_mov_b64 exec, {(1 << pf1) - 1}')
        A(f's_mov_b32 m0, {DUM}')
        A(f's_add_u32 s{t}, s{t}, 128')
        A(f'buffer_load_dword v{r.T+1}, s[{r.sX}:{r.sX+3}], s{t} offen lds')
        A('s_mov_b64 exec, -1')
    dispatch(A, r, 0, NE0())
    A('TO_PHASE1:')
    A(f'v_lshlrev_b32 v{r.T+1}, 2, v{r.PL}')
    A(f'v_add_u32 v{r.T+1}, {WR1}, v{r.T+1}')
    for i in range(20):
        A(f'ds_read_b128 v[{r.W+4*i}:{r.W+4*i+3}], v{r.T+1} offset:{i*1024}')
    if OPT.get('pk'): A(f'v_and_b32 v{r.PL}, 127, v{r.PL}')
    for b in range(4): A(f's_mov_b32 s{r.sC+b}, {b*256+128}')
    A(f's_mov_b32 s{r.sIt}, 0')
    A('s_waitcnt lgkmcnt(0)')
    stamp(A, r, opt, 5)
    dispatch(A, r, 1, 0)
    if OPT.get('last1', 1):
        A('LAST1:')
        A(f's_cmp_eq_u32 s{r.sIt}, 5')
        A('s_cbranch_scc1 TAIL')
        A(f'v_mov_b32 v{r.LO}, 0x7f000000')
        A(f's_load_dwordx2 s[{r.sP}:{r.sP+1}], s[0:1], 72')
        dispatch(A, r, 1, NE0() + NPW())

def wsi_loads(A, r, vaddr):
    t = r.sT
    A(f's_mul_i32 s{t}, s{r.sWave}, 20480')
    A(f's_add_u32 s{t}, s{t}, {F_WSI if OPT.get("fused") else WS_WSI}')
    for i in range(20):
        A(f'buffer_load_dwordx4 v[{r.W+4*i}:{r.W+4*i+3}], v{vaddr}, s[{r.sWS}:{r.sWS+3}], s{t} offen offset:{(i%4)*1024} {OPT.get("sc","sc1") if OPT.get("fused") else ""}')
        if i % 4 == 3 and i < 19: A(f's_add_u32 s{t}, s{t}, 4096')

def tail2(A, r, opt, D, AD, F, NF, M, KQ, O):
    t = r.sT; G = 192
    A(f's_mul_i32 s{t}, s{r.sBk}, {NPB*1024}')
    A(f's_lshl_b32 s{t+1}, s{r.sWave}, 5')
    A(f's_add_u32 s{t}, s{t}, s{t+1}')
    A(f's_mov_b32 s{t+1}, 0xbfb8aa3b')
    A(f'v_lshlrev_b32 v{O}, 10, v{M}')
    A(f'v_lshl_add_u32 v{O}, v{KQ}, 3, v{O}')
    A(f'v_cmp_gt_u32 vcc, {NPB-32}, v{M}')
    A(f'v_add_u32 v{O+1}, 0x4000, v{O}')
    A(f'v_add_u32 v{O+2}, 0x8000, v{O}')
    A(f'v_mov_b32 v{O+3}, 0x7f000000')
    A(f'v_cndmask_b32 v{O+2}, v{O+3}, v{O+2}, vcc')
    if opt.get('out_mode') == 'lin':
        A(f's_mul_i32 s{t+2}, s{r.sWave}, {5120-32}')
        A(f's_add_u32 s{t}, s{t}, s{t+2}')
        A(f'v_lshlrev_b32 v{O}, 3, v176')
        A(f'v_add_u32 v{O+1}, 2048, v{O}')
        A(f'v_add_u32 v{O+2}, 3072, v{O}')
    A('s_barrier')
    stamp(A, r, opt, 7)
    def job(f, comp, T):
        fp = f if f < 8 else f - 8
        gi, ph, ks = fp >> 2, (fp >> 1) & 1, fp & 1
        g = f'A{gi}' if f < 8 else f'B{gi}' + 'xyz'[comp-1]
        return (f, comp, T, AD + (T*2+ph)*2 + ks, GRP.index(g)*128)
    jobs = [job(f, 0, T) for f in range(8) for T in range(3)]
    for T in range(3): jobs += [job(f, comp, T) for f in range(8, 20) for comp in (1, 2, 3)]
    dreg = lambda comp, T: D + (comp*3 + T)*4
    def out(comp, T):
        d = dreg(comp, T); o = []
        if comp: o += [f'v_mul_f32 v{d+i}, v{d+i}, v{G+T*4+i}' for i in range(4)]
        o += [f'v_cvt_pk_bf16_f32 v{d}, v{d}, v{d+1}', f'v_cvt_pk_bf16_f32 v{d+1}, v{d+2}, v{d+3}',
              f'buffer_store_dwordx2 v[{d}:{d+1}], v{O+T}, s[{r.sOUT}:{r.sOUT+3}], s{t} offen offset:{comp*(512 if opt.get("out_mode") == "lin" else 256)} {opt.get("out_aux","")}']
        if opt.get('out_mode') == 'none': o[-1] = 's_nop 0'
        return o
    gate = []
    for T in range(3):
        g = G + 4*T; d = D + 4*T
        gate += [f'v_mul_f32 v{g+i}, s{t+1}, v{d+i}' for i in range(4)] + [f'v_exp_f32 v{g+i}, v{g+i}' for i in range(4)]
        gate += [f'v_add_f32 v{g+i}, 1.0, v{g+i}' for i in range(4)] + [f'v_rcp_f32 v{g+i}, v{g+i}' for i in range(4)]
    fills = {24 + 3: gate, 24 + 36 + 3: out(0, 0) + out(0, 1) + out(0, 2) + out(1, 0) + out(2, 0) + out(3, 0),
             24 + 72 + 3: out(1, 1) + out(2, 1) + out(3, 1)}
    per = {24 + 3: 2, 24 + 36 + 3: 1, 24 + 72 + 3: 1}
    seen = set(); cur = []; n = 0
    def rd(i):
        f, comp, T, ad, off = jobs[i]
        A(f'ds_read_b128 v[{F+4*(i%NF)}:{F+4*(i%NF)+3}], v{ad} offset:{off}')
    for i in range(NF - 1): rd(i)
    fseen = set()
    for i, (f, comp, T, ad, off) in enumerate(jobs):
        if i + NF - 1 < len(jobs): rd(i + NF - 1)
        w = f's_waitcnt lgkmcnt({min(NF-1, len(jobs)-1-i)})'
        if f not in fseen:
            w = f's_waitcnt vmcnt({19-f}) lgkmcnt({min(NF-1, len(jobs)-1-i)})'; fseen.add(f)
        A(w)
        d = dreg(comp, T)
        c = f'v[{d}:{d+3}]' if (comp, T) in seen else '0'
        seen.add((comp, T))
        A(f'v_mfma_f32_16x16x32_bf16 v[{d}:{d+3}], v[{r.W+4*f}:{r.W+4*f+3}], v[{F+4*(i%NF)}:{F+4*(i%NF)+3}], {c}')
        if i in fills:
            assert not cur
            cur = list(fills[i]); n = per[i]
        for o in cur[:n]: A(o)
        cur = cur[n:]
    assert not cur
    stamp(A, r, opt, 8)
    for comp in (1, 2, 3):
        A.pad_since_mfma(dreg(comp, 2), 8)
        for o in out(comp, 2): A(o)

def tail3(A, r, opt, D, AD, F, NF, L, M, KQ, ROW):
    t = r.sT; G = 192; WA = 204; WB = 205; RA = 206; L16 = 210; RD = 212
    NF = opt.get('nf', 6); F = 96 - 4 * NF; assert F >= AD + 12
    sO = r.sM; sR = r.sM + 2
    aux = opt.get('out_aux', 'sc1')
    A(f's_mov_b32 s{t+1}, 0xbfb8aa3b')
    A0 = A; A = Asm()
    A(f'v_lshrrev_b32 v{WB}, 1, v{KQ}')
    A(f'v_lshl_add_u32 v{WB}, s{r.sWave}, 1, v{WB}')
    A(f'v_and_b32 v{WA}, 7, v{M}')
    A(f'v_xor_b32 v{WB}, v{WB}, v{WA}')
    A(f'v_and_b32 v{WA}, 1, v{KQ}')
    A(f'v_lshlrev_b32 v{WA}, 3, v{WA}')
    A(f'v_lshl_add_u32 v{WB}, v{WB}, 4, v{WA}')
    A(f'v_and_b32 v{WA}, 8, v{M}')
    A(f'v_lshl_add_u32 v{WA}, v{WA}, 4, v{WB}')
    A(f'v_lshl_add_u32 v{WA}, v{M}, 10, v{WA}')
    A(f'v_add_u32 v{WA}, {WR1}, v{WA}')
    A(f'v_add_u32 v{WB}, v{WB}, v{ROW}')
    WC = 220
    A(f'v_and_b32 v{WC}, 8, v{M}')
    A(f'v_mul_u32_u24 v{WC}, 1008, v{WC}')
    A(f'v_sub_u32 v{WC}, v{WA}, v{WC}')
    A(f'v_lshlrev_b32 v{L16}, 4, v{L}')
    A(f's_lshl_b32 s{t+2}, s{r.sWave}, 1')
    A(f's_add_u32 s{t+3}, s{t+2}, 1')
    A(f'v_readlane_b32 s{sR}, v{ROW}, s{t+2}')
    A(f'v_readlane_b32 s{sR+1}, v{ROW}, s{t+3}')
    A(f's_and_b32 s{t+4}, s{t+2}, 7')
    A(f's_lshl_b32 s{t+4}, s{t+4}, 4')
    A(f'v_xor_b32 v{RA}, s{t+4}, v{L16}')
    A(f'v_xor_b32 v{RA+1}, 16, v{RA}')
    A(f'v_add_u32 v{RA+2}, s{sR}, v{RA}')
    A(f'v_add_u32 v{RA+3}, s{sR+1}, v{RA+1}')
    A(f's_lshl_b32 s{t+4}, s{t+2}, 10')
    A(f's_and_b32 s{t+5}, s{t+2}, 8')
    A(f's_lshl_b32 s{t+5}, s{t+5}, 4')
    A(f's_add_u32 s{t+5}, s{t+5}, s{t+4}')
    A(f's_add_u32 s{t+5}, s{t+5}, {WR1}')
    A(f'v_add_u32 v{RA}, s{t+5}, v{RA}')
    A(f'v_add_u32 v{RA+1}, s{t+5}, v{RA+1}')
    A(f's_mul_i32 s{t}, s{r.sBk}, {NPB*1024}')
    A(f's_add_u32 s{sO}, s{t}, s{t+4}')
    A(f's_add_u32 s{sO+1}, s{sO}, 0x4000')
    A(f's_lshl_b32 s{t+4}, s{r.sWave}, 10')
    A(f's_add_u32 s{t}, s{t}, s{t+4}')
    A(f's_add_u32 s{t}, s{t}, 0x8000')
    A(f's_add_u32 s{t+4}, s{t+4}, {WR1}')
    A(f's_lshl_b32 s{t+5}, s{r.sWave}, 4')
    A(f'v_xor_b32 v{L16+1}, s{t+5}, v{L16}')
    A(f'v_add_u32 v{L16+1}, s{t+4}, v{L16+1}')
    setup = [x.strip() for x in A.L]; A = A0
    if not opt.get('tshadow', 1):
        for o in setup: A(o)
        setup = []
    await_rows(A, r)
    stamp(A, r, opt, 7)
    def job(f, comp, T):
        fp = f if f < 8 else f - 8
        gi, ph, ks = fp >> 2, (fp >> 1) & 1, fp & 1
        g = f'A{gi}' if f < 8 else f'B{gi}' + 'xyz'[comp-1]
        return (f, comp, T, AD + (T*2+ph)*2 + ks, GRP.index(g)*128)
    jobs = [job(f, 0, T) for f in range(8) for T in range(3)]
    jobs += [job(f, comp, 0) for f in range(8, 20) for comp in (1, 2, 3)]
    pack = opt.get('pack', 1)
    for T in (1, 2): jobs += [job(f, comp, T) for comp in ((1, 3) if pack and T == 2 else (1, 2, 3)) for f in range(8, 20)]
    dreg = lambda comp, T: D + (comp*3 + T)*4
    def out(comp, T):
        d = dreg(comp, T); o = []
        if comp: o += [f'v_mul_f32 v{d+i}, v{d+i}, v{G+T*4+i}' for i in range(4)]
        o += [f'v_cvt_pk_bf16_f32 v{d}, v{d}, v{d+1}', f'v_cvt_pk_bf16_f32 v{d+1}, v{d+2}, v{d+3}',
              (f'W{T}', f'ds_write_b64 v{WB if T == 1 else WC if pack and (comp, T) == (1, 2) else WA}, v[{d}:{d+1}] offset:{comp*256}')]
        return o
    def send(T, gap=0):
        o = [('wait', f'W{T}'), 's_barrier']
        rows = [(RA, 0, sO, 0), (RA+1, 1024, sO, 1024)] if T == 0 else [(RA+2, 0, sO+1, 0), (RA+3, 0, sO+1, 1024)] if T == 1 else [(L16+1, 0, t, 0)]
        for j, (ra, lo, so, go) in enumerate(rows): o += [(f'R{T}{j}', f'ds_read_b128 v[{RD+4*j}:{RD+4*j+3}], v{ra} offset:{lo}')]
        o += [None] * gap
        for j, (ra, lo, so, go) in enumerate(rows):
            o += [('wait', f'R{T}{j}'), f'buffer_store_dwordx4 v[{RD+4*j}:{RD+4*j+3}], v{L16}, s[{r.sOUT}:{r.sOUT+3}], s{so} offen offset:{go} {aux}']
        return o
    gate = []
    for T in range(3):
        g = G + 4*T; d = D + 4*T
        gate += [f'v_mul_f32 v{g+i}, s{t+1}, v{d+i}' for i in range(4)] + [f'v_exp_f32 v{g+i}, v{g+i}' for i in range(4)]
        gate += [f'v_add_f32 v{g+i}, 1.0, v{g+i}' for i in range(4)] + [f'v_rcp_f32 v{g+i}, v{g+i}' for i in range(4)]
    if pack: gate_fix = [f'v_mov_b32_dpp v{G+8+i}, v{G+8+i} row_ror:8 row_mask:0xf bank_mask:0xc' for i in range(4)]
    J1 = 24 + 36; J2 = J1 + 36
    if opt.get('sched', 1) == 0:
        fills = {24 + 3: (2, gate + out(0, 0)),
                 J1 + 3: (2, out(1, 0) + out(2, 0) + out(3, 0) + [None]*3 + send(0, 2)),
                 J1 + 27: (2, out(0, 1) + out(1, 1) + out(2, 1)),
                 J2 + 3: (1, out(3, 1) + [None]*2 + send(1, 2)),
                 J2 + 24: (2, out(0, 2) + out(1, 2) + [None]*2 + out(2, 2))}
    elif pack:
        gp = NF - 1
        fills = {24 + 3: (2, gate + out(0, 0) + [None] + gate_fix),
                 J1 + 2: (2, out(1, 0) + out(2, 0) + out(3, 0) + [None]*(2*gp+1) + send(0, 2*gp)),
                 J2 - 9: (2, out(0, 1) + out(1, 1) + out(2, 1) + [None]*7 + out(3, 1) + [None]*opt.get('g1', 5) + send(1, opt.get('g2', 6))),
                 J2 + 19: (2, out(0, 2) + out(1, 2))}
    else:
        gp = NF - 1
        fills = {24 + 3: (2, gate + out(0, 0)),
                 J1 + 2: (2, out(1, 0) + out(2, 0) + out(3, 0) + [None]*(2*gp+1) + send(0, 2*gp)),
                 J2 - 6: (2, out(0, 1) + out(1, 1) + out(2, 1) + [None] + out(3, 1) + [None]*(2*gp+1) + send(1, 2*gp)),
                 J2 + 27: (2, out(0, 2) + out(1, 2) + out(2, 2))}
    if setup: fills[0] = (2, setup)
    lg = Q(15)
    def emit(o):
        if o is None: return
        if isinstance(o, str): A(o)
        elif o[0] == 'wait': wait(A, lg=lg.need(o[1]))
        else: A(o[1]); lg.add(o[0])
    seen = set(); cur = []; n = 0
    def rd(i):
        f, comp, T, ad, off = jobs[i]
        A(f'ds_read_b128 v[{F+4*(i%NF)}:{F+4*(i%NF)+3}], v{ad} offset:{off}'); lg.add(f'F{i}')
    for i in range(NF - 1): rd(i)
    fseen = set()
    for i, (f, comp, T, ad, off) in enumerate(jobs):
        if i + NF - 1 < len(jobs): rd(i + NF - 1)
        wait(A, vm=None if f in fseen else 19 - f, lg=lg.need(f'F{i}')); fseen.add(f)
        d = dreg(comp, T)
        c = f'v[{d}:{d+3}]' if (comp, T) in seen else '0'
        seen.add((comp, T))
        A(f'v_mfma_f32_16x16x32_bf16 v[{d}:{d+3}], v[{r.W+4*f}:{r.W+4*f+3}], v[{F+4*(i%NF)}:{F+4*(i%NF)+3}], {c}')
        if i in fills:
            assert not cur, (i, cur)
            n, cur = fills[i]; cur = list(cur)
        for o in cur[:n]:
            if isinstance(o, str) and o.startswith('v_'):
                for src in re.findall(r'\bv(\d+)', o):
                    if int(src) < 48: A.pad_since_mfma(int(src) & ~3, 8)
            emit(o)
        cur = cur[n:]
    assert not cur
    stamp(A, r, opt, 8)
    A.pad_since_mfma(dreg(3, 2), 8)
    for o in out(3, 2) + send(2): emit(o)

ARR = CNT + 61 * 4
def arrive(A):
    A(f'v_mov_b32 v190, {ARR}')
    A('v_mov_b32 v191, 1')
    A('s_mov_b64 exec, 1')
    A('ds_add_u32 v190, v191')
    A('s_mov_b64 exec, -1')

def await_rows(A, r):
    if not OPT.get('split', 0):
        A('s_barrier')
        return
    A('T_wait:')
    A('ds_read_b32 v191, v190')
    A('s_waitcnt lgkmcnt(0)')
    A(f'v_readfirstlane_b32 s{r.sT+2}, v191')
    A(f's_cmp_lt_u32 s{r.sT+2}, 8')
    A('s_cbranch_scc1 T_wait')

def tail(A, r, opt):
    t = r.sT
    D = 0; AD = 48; F = 72; NF = 6
    L = 176; M = 177; KQ = 178; MC = 179; T0 = 180; T1 = 181; ROW = 182; O = 188
    A('TAIL:')
    A('s_setprio 0')
    A('s_waitcnt vmcnt(0) lgkmcnt(0)')
    stamp(A, r, opt, 6)
    split = OPT.get('split', 0)
    def wloads():
        A(f'v_lshrrev_b32 v{L}, 2, v{r.PL}')
        A(f'v_lshlrev_b32 v{T0}, 2, v{r.PL}')
        if OPT.get('fused'):
            kf = __import__(OPT.get('kf', 'kf1'))
            kf.tail_flags(A, r, opt, L)
        wsi_loads(A, r, T0)
    if not split: wloads()
    for rr in range(5):
        A(f's_lshr_b32 s{t+1}, s{r.sM+rr}, 17')
        A(f's_and_b32 s{t+2}, s{t+1}, 128')
        A(f's_and_b32 s{t+1}, s{t+1}, 0x70')
        A(f's_add_u32 s{t+2}, s{t+2}, s{r.sRing}')
        A(f'v_xor_b32 v{T1}, s{t+1}, v{r.PL}')
        A(f'v_add_u32 v{T1}, s{t+2}, v{T1}')
        for wi in range(0, 6, 2):
            if OPT.get('w2', 1): A(f'ds_write2st64_b32 v{T1}, v{r.ST+rr*6+wi}, v{r.ST+rr*6+wi+1} offset0:{rr*6+wi} offset1:{rr*6+wi+1}')
            else:
                for q in range(2): A(f'ds_write_b32 v{T1}, v{r.ST+rr*6+wi+q} offset:{rr*PROW+(wi+q)*256}')
    if split:
        arrive(A)
        wloads()
    A('GEMM:')
    if not OPT.get('last1', 1): A(f's_load_dwordx2 s[{r.sP}:{r.sP+1}], s[0:1], 72')
    A(f'v_and_b32 v{M}, 15, v{L}')
    A(f'v_lshrrev_b32 v{KQ}, 4, v{L}')
    A(f'v_and_b32 v{MC}, 7, v{M}')
    A(f'v_lshlrev_b32 v{T0}, 3, v{M}')
    A(f'v_lshlrev_b32 v{T1}, 3, v{MC}')
    A(f'v_add_u32 v{T0}, {TAB}, v{T0}')
    A(f'v_add_u32 v{T1}, {TAB}, v{T1}')
    A(f'ds_read_b64 v[{ROW}:{ROW+1}], v{T0}')
    A(f'ds_read_b64 v[{ROW+2}:{ROW+3}], v{T0} offset:128')
    A(f'ds_read_b64 v[{ROW+4}:{ROW+5}], v{T1} offset:256')
    A(f'v_xor_b32 v{T0}, v{MC}, v{KQ}')
    A(f'v_and_b32 v{T1}, 8, v{M}')
    A(f'v_xor_b32 v{O}, 4, v{T0}')
    A(f'v_add_u32 v{O+1}, v{O}, v{T1}')
    A(f'v_add_u32 v{T1}, v{T0}, v{T1}')
    A('s_waitcnt lgkmcnt(0)')
    srd(A, r.sOUT, r.sP, N*1024)
    for T in range(3):
        for ph in range(2):
            for ks in range(2):
                p = [[T0, O], [T1, O+1]][T == 2][ks]
                A(f'v_lshl_add_u32 v{AD+(T*2+ph)*2+ks}, v{p}, 4, v{ROW+2*T+ph}')
    if opt.get('tail2', 2) == 2:
        tail3(A, r, opt, D, AD, F, NF, L, M, KQ, ROW)
    elif opt.get('tail2', 2):
        tail2(A, r, opt, D, AD, F, NF, M, KQ, O)
    else:
        A('s_barrier')
        stamp(A, r, opt, 7)
        jobs = []
        for f in range(20):
            fp = f if f < 8 else f - 8
            gi, ph, ks = fp >> 2, (fp >> 1) & 1, fp & 1
            for comp in ([0] if f < 8 else [1, 2, 3]):
                g = f'A{gi}' if f < 8 else f'B{gi}' + 'xyz'[comp-1]
                for T in range(3):
                    jobs.append((f, comp, T, AD + (T*2+ph)*2 + ks, GRP.index(g)*128))
        seen = set()
        def rd(i):
            f, comp, T, ad, off = jobs[i]
            A(f'ds_read_b128 v[{F+4*(i%NF)}:{F+4*(i%NF)+3}], v{ad} offset:{off}')
        for i in range(NF - 1): rd(i)
        lastf = -1
        for i, (f, comp, T, ad, off) in enumerate(jobs):
            if i + NF - 1 < len(jobs): rd(i + NF - 1)
            w = f's_waitcnt lgkmcnt({min(NF-1, len(jobs)-1-i)})'
            if f != lastf:
                w = f's_waitcnt vmcnt({19-f}) lgkmcnt({min(NF-1, len(jobs)-1-i)})'; lastf = f
            A(w)
            d = D + (comp*3 + T)*4
            c = f'v[{d}:{d+3}]' if (comp, T) in seen else '0'
            seen.add((comp, T))
            A(f'v_mfma_f32_16x16x32_bf16 v[{d}:{d+3}], v[{r.W+4*f}:{r.W+4*f+3}], v[{F+4*(i%NF)}:{F+4*(i%NF)+3}], {c}')
        stamp(A, r, opt, 8)
        G = 72
        A(f's_mov_b32 s{t}, 0xbfb8aa3b')
        for i in range(12): A(f'v_mul_f32 v{G+i}, s{t}, v{D+i}')
        for i in range(12): A(f'v_exp_f32 v{G+i}, v{G+i}')
        for i in range(12): A(f'v_add_f32 v{G+i}, 1.0, v{G+i}')
        for i in range(12): A(f'v_rcp_f32 v{G+i}, v{G+i}')
        A(f's_mul_i32 s{t}, s{r.sBk}, {NPB*1024}')
        A(f's_lshl_b32 s{t+1}, s{r.sWave}, 5')
        A(f's_add_u32 s{t}, s{t}, s{t+1}')
        A(f'v_lshlrev_b32 v{O}, 10, v{M}')
        A(f'v_lshl_add_u32 v{O}, v{KQ}, 3, v{O}')
        A(f'v_add_u32 v{O+1}, 0x4000, v{O}')
        A(f'v_add_u32 v{O+2}, 0x8000, v{O}')
        A(f'v_mov_b32 v{O+3}, 0x7f000000')
        A(f'v_cmp_gt_u32 vcc, {NPB-32}, v{M}')
        for comp in range(1, 4):
            for i in range(12):
                A(f'v_mul_f32 v{D+comp*12+i}, v{D+comp*12+i}, v{G+i}')
        A(f'v_cndmask_b32 v{O+2}, v{O+3}, v{O+2}, vcc')
        for comp in range(4):
            for T in range(3):
                d = D + (comp*3 + T)*4
                A(f'v_cvt_pk_bf16_f32 v{d}, v{d}, v{d+1}')
                A(f'v_cvt_pk_bf16_f32 v{d+1}, v{d+2}, v{d+3}')
                A(f'buffer_store_dwordx2 v[{d}:{d+1}], v{O+T}, s[{r.sOUT}:{r.sOUT+3}], s{t} offen offset:{comp*256} {opt.get("out_aux","")}')
    if opt.get('stamps'): A('s_waitcnt vmcnt(0)')
    stamp(A, r, opt, 9)
    stamp_out(A, r, opt)
    if OPT.get('fused'):
        kf = __import__(OPT.get('kf', 'kf1'))
        kf.epoch_store(A, r, opt)

def gen_k2(A, opt):
    OPT.clear(); OPT.update(opt)
    r = alloc()
    name = K2_NAME
    A(f'.globl {name}\n.p2align 8\n.type {name},@function\n{name}:')
    A(f's_cmp_ge_u32 s2, {NB}')
    A('s_cbranch_scc1 K2_end')
    if opt.get('fused'):
        kf = __import__(OPT.get('kf', 'kf1'))
        kf.startup_f(A, r, opt)
    else: startup(A, r, opt)
    between(A, r, opt)
    for phase in range(2):
        for H in HS:
            A('.p2align 6')
            item(A, r, H, phase, opt)
    A('.p2align 6')
    tail(A, r, opt)
    A('K2_end:')
    A('K2_last:')
    A('s_endpgm')
    A('SLOW:')
    from slow import gen_slow
    gen_slow(A, r, opt)
    return dict(name=name, vgpr=256, sgpr=r.ns, lds=LDS_TOTAL)
```

```python
from asmlib import *
from common import *

def gen_slow(A, r, opt):
    import k2
    RAW, TAB, PROW, GRP = k2.RAW, k2.TAB, k2.PROW, k2.GRP
    t = r.sT
    sD = r.sEx; sS = r.sEx + 4; sR = r.sEx + 8; sW = r.sEx + 12
    P = r.sM
    assert P % 2 == 0
    sG = r.sC; sE0 = r.sC + 1; sI = r.sC + 2; sE = r.sC + 3; sN = r.sIt
    MK = r.sPS
    assert MK % 2 == 0 and r.sA == r.sPS + 4
    W = 0
    AC = 160
    EP = 184
    EA = 192
    F = 208
    RR = 216
    Y = 226; T = 229; DS = 236; L = 240; CH = 241; Z = 242; XO = 243; RW = 244; L4 = 245
    a = lambda g, blk: AC + GRP.index(g) * 2 + blk
    if opt.get('fused'):
        A(f'v_readlane_b32 s{r.sFl}, v4, 62')
    A('s_waitcnt vmcnt(0) lgkmcnt(0)')
    A('s_barrier')
    A(f's_load_dwordx2 s[{P}:{P+1}], s[0:1], 8')
    A(f's_load_dwordx2 s[{P+2}:{P+3}], s[0:1], 24')
    A(f's_load_dwordx2 s[{P+4}:{P+5}], s[0:1], 32')
    A(f's_load_dwordx2 s[{P+6}:{P+7}], s[0:1], 40')
    A(f's_load_dwordx2 s[{P+8}:{P+9}], s[0:1], 0')
    A(f'v_mbcnt_lo_u32_b32 v{L}, -1, 0')
    A(f'v_mbcnt_hi_u32_b32 v{L}, -1, v{L}')
    A(f'v_lshrrev_b32 v{T}, 5, v{L}')
    A(f'v_and_b32 v{T+1}, 31, v{L}')
    A(f'v_lshlrev_b32 v{CH}, 7, v{T}')
    A(f'v_lshl_add_u32 v{CH}, v{T+1}, 1, v{CH}')
    A(f'v_lshlrev_b32 v{L4}, 4, v{L}')
    A(f'v_mov_b32 v{Z}, 0')
    A('s_waitcnt lgkmcnt(0)')
    srd(A, sR, P, E*6); srd(A, sS, P+2, E*4); srd(A, sD, P+4, E*4); srd(A, sW, P+6, 16*640*2); srd(A, r.sX, P+8, N*1024)
    for d in range(16):
        A(f's_mov_b32 s{t}, {d*1280}')
        for k in range(5):
            for blk in range(2):
                A(f'buffer_load_ushort v{W+d*10+k*2+blk}, v{CH}, s[{sW}:{sW+3}], s{t} offen offset:{k*256+blk*64}')
        A('s_waitcnt vmcnt(0)')
    for i in range(160): A(f'v_lshlrev_b32 v{W+i}, 16, v{W+i}')
    A(f's_mov_b32 s{sN}, 0')
    A('SL_node:')
    A(f's_mul_i32 s{sG}, s{r.sBk}, {NPB}')
    A(f's_mul_i32 s{t}, s{r.sWave}, 5')
    A(f's_add_u32 s{t}, s{t}, s{sN}')
    A(f's_add_u32 s{sG}, s{sG}, s{t}')
    for i in range(22): A(f'v_mov_b32 v{AC+i}, 0')
    A(f's_mov_b32 s{sE0}, 0')
    A('SL_scan:')
    A(f's_lshl_b32 s{t}, s{sE0}, 2')
    A(f'buffer_load_dwordx4 v[{DS}:{DS+3}], v{L4}, s[{sD}:{sD+3}], s{t} offen')
    A('s_waitcnt vmcnt(0)')
    for i in range(4): A(f'v_cmp_eq_u32 s[{MK+2*i}:{MK+2*i+1}], s{sG}, v{DS+i}')
    A(f's_mov_b32 s{sI}, 0')
    A('SL_bits:')
    A(f's_cmp_eq_u64 s[{MK}:{MK+1}], 0')
    A('s_cbranch_scc1 SL_nexti')
    A(f's_ff1_i32_b64 s{t}, s[{MK}:{MK+1}]')
    A(f's_bitset0_b64 s[{MK}:{MK+1}], s{t}')
    A(f's_lshl_b32 s{t}, s{t}, 2')
    A(f's_add_u32 s{sE}, s{t}, s{sI}')
    A(f's_add_u32 s{sE}, s{sE}, s{sE0}')
    A(f's_lshl_b32 s{t}, s{sE}, 2')
    A(f's_lshl_b32 s{t+1}, s{sE}, 5')
    A(f's_mul_i32 s{t+2}, s{sE}, 6')
    A(f'buffer_load_dword v{XO}, v{Z}, s[{sS}:{sS+3}], s{t} offen')
    A(f'buffer_load_dwordx4 v[{EP}:{EP+3}], v{Z}, s[{r.sEA}:{r.sEA+3}], s{t+1} offen')
    A(f'buffer_load_dwordx4 v[{EP+4}:{EP+7}], v{Z}, s[{r.sEA}:{r.sEA+3}], s{t+1} offen offset:16')
    for j in range(3):
        A(f'buffer_load_ushort v{Y+j}, v{Z}, s[{sR}:{sR+3}], s{t+2} offen offset:{2*j}')
    A('s_waitcnt vmcnt(5)')
    A(f'v_lshl_add_u32 v{XO}, v{XO}, 10, v{CH}')
    for b in range(4):
        for blk in range(2):
            A(f'buffer_load_ushort v{F+b*2+blk}, v{XO}, s[{r.sX}:{r.sX+3}], 0 offen offset:{b*256+blk*64}')
    A('s_waitcnt vmcnt(8)')
    for j in range(8):
        A(f'v_lshlrev_b32 v{EA+2*j}, 16, v{EP+j}')
        A(f'v_and_b32 v{EA+2*j+1}, 0xffff0000, v{EP+j}')
    for j in range(3): A(f'v_lshlrev_b32 v{Y+j}, 16, v{Y+j}')
    for d in range(16):
        for i in range(10):
            A(f'v_mul_f32 v{RR+i}, v{EA}, v{W+i}' if d == 0 else f'v_fmac_f32 v{RR+i}, v{EA+d}, v{W+d*10+i}')
    A('s_waitcnt vmcnt(0)')
    for i in range(8): A(f'v_lshlrev_b32 v{F+i}, 16, v{F+i}')
    for blk in range(2):
        f = lambda b: F + b * 2 + blk
        R = lambda k: RR + k * 2 + blk
        A(f'v_fmac_f32 v{a("A0",blk)}, v{f(0)}, v{R(0)}')
        A(f'v_mul_f32 v{T}, v{f(1)}, v{Y}')
        A(f'v_fmac_f32 v{T}, v{f(2)}, v{Y+1}')
        A(f'v_fmac_f32 v{T}, v{f(3)}, v{Y+2}')
        A(f'v_fmac_f32 v{a("A1",blk)}, v{T}, v{R(1)}')
        A(f'v_mul_f32 v{T}, v{f(0)}, v{R(2)}')
        for j, n in enumerate('xyz'):
            j1, j2 = (j + 1) % 3, (j + 2) % 3
            A(f'v_fmac_f32 v{a("B0"+n,blk)}, v{T}, v{Y+j}')
            A(f'v_fmac_f32 v{a("B1"+n,blk)}, v{f(1+j)}, v{R(3)}')
            A(f'v_mul_f32 v{T+1}, v{Y+j1}, v{f(1+j2)}')
            A(f'v_fma_f32 v{T+1}, -v{Y+j2}, v{f(1+j1)}, v{T+1}')
            A(f'v_fmac_f32 v{a("B2"+n,blk)}, v{T+1}, v{R(4)}')
    A('s_branch SL_bits')
    A('SL_nexti:')
    for i in range(3): A(f's_mov_b64 s[{MK+2*i}:{MK+2*i+1}], s[{MK+2*i+2}:{MK+2*i+3}]')
    A(f's_add_u32 s{sI}, s{sI}, 1')
    A(f's_cmp_lt_u32 s{sI}, 4')
    A('s_cbranch_scc1 SL_bits')
    A(f's_add_u32 s{sE0}, s{sE0}, 256')
    A(f's_cmp_lt_u32 s{sE0}, {E}')
    A('s_cbranch_scc1 SL_scan')
    A(f's_mul_i32 s{t}, s{r.sWave}, 5')
    A(f's_add_u32 s{t}, s{t}, s{sN}')
    A(f's_lshl_b32 s{t+1}, s{t}, 4')
    A(f's_and_b32 s{t+2}, s{t+1}, 128')
    A(f's_and_b32 s{t+1}, s{t+1}, 0x70')
    A(f's_mul_i32 s{t+3}, s{sN}, {PROW}')
    A(f's_add_u32 s{t+3}, s{t+3}, s{r.sRing}')
    A(f's_add_u32 s{t+3}, s{t+3}, s{t+2}')
    A(f's_mul_i32 s{t+4}, s{t}, {PROW}')
    A(f's_add_u32 s{t+4}, s{t+4}, {(RAW + 255) // 256 * 256}')
    A(f's_add_u32 s{t+4}, s{t+4}, s{t+2}')
    A(f'v_mov_b32 v{T+1}, s{t+3}')
    A(f'v_mov_b32 v{T+2}, s{t+4}')
    A(f'v_cmp_gt_u32 vcc, 32, v{L}')
    A(f'v_and_b32 v{T}, 31, v{L}')
    A(f'v_lshlrev_b32 v{T}, 2, v{T}')
    A(f'v_xor_b32 v{T}, s{t+1}, v{T}')
    A(f'v_cndmask_b32 v{RW}, v{T+2}, v{T+1}, vcc')
    A(f'v_add_u32 v{RW}, v{RW}, v{T}')
    for g in range(11):
        A(f'v_cvt_pk_bf16_f32 v{AC+2*g}, v{AC+2*g}, v{AC+2*g+1}')
        A(f'ds_write_b32 v{RW}, v{AC+2*g} offset:{g*128}')
    A(f's_lshl_b32 s{t}, s{t}, 3')
    A(f's_add_u32 s{t}, s{t}, {TAB}')
    A(f'v_mov_b32 v{T}, s{t}')
    assert (T + 1) % 2 == 0
    A(f'ds_write_b64 v{T}, v[{T+1}:{T+2}]')
    A(f's_add_u32 s{sN}, s{sN}, 1')
    A(f's_cmp_lt_u32 s{sN}, 5')
    A('s_cbranch_scc1 SL_node')
    A('s_waitcnt lgkmcnt(0)')
    A('s_barrier')
    A(f'v_mov_b32 v176, v{L}')
    if opt.get('fused'):
        kf = __import__(opt.get('kf', 'kf1'))
        kf.slow_wsi(A, r, 176)
    else: k2.wsi_loads(A, r, L4)
    A(f's_load_dwordx2 s[{r.sP}:{r.sP+1}], s[0:1], 72')
    if opt.get('split', 0): k2.arrive(A)
    A('s_branch GEMM')
```

```python
import sys, json
from asmlib import *
from common import *
from k1 import gen_k1
from k2 import gen_k2

HEAD = open('standalone__tensor_product_equiv_equiformer__graph.s.ref').read().split('; Override launch')[0]

def build(opt):
    A = Asm()
    A('.amdgcn_target "amdgcn-amd-amdhsa--gfx950"')
    A('.text')
    if opt.get('fused'):
        k2 = gen_k2(A, opt)
        A('.section .rodata,"a"')
        A('.p2align 6')
        A.L.append(kd(k2['name'], k2['vgpr'], k2['sgpr']))
        head = HEAD + '; Generated by gen/gen.py (hand-written generator). One launch: edge partition with tagged hand-off, gather + MFMA, output GEMM.\n'
        head += f'; @launch grid=({NB},1,1) block=(512,1,1) lds={k2["lds"]}\n'
        if opt.get('pts'): head += '; pts: ' + ' '.join(opt['pts']) + '\n'
        return head + A.text()
    k1 = gen_k1(A, opt)
    k2 = gen_k2(A, opt)
    A('.section .rodata,"a"')
    for k in (k1, k2):
        A('.p2align 6')
        A.L.append(kd(k['name'], k['vgpr'], k['sgpr']))
    head = HEAD
    head += '; Generated by gen/gen.py (hand-written generator). Two launches: edge partition + weight re-layout, then the main kernel.\n'
    head += f'; @launch kernel={k1["name"]} grid=({K1_GRID},1,1) block=({K1_THREADS},1,1) lds={k1["lds"]}\n'
    head += f'; @launch kernel={k2["name"]} grid=({NB},1,1) block=(512,1,1) lds={k2["lds"]}\n'
    return head + A.text()

if __name__ == '__main__':
    opt = json.loads(sys.argv[2]) if len(sys.argv) > 2 else {}
    out = sys.argv[1] if len(sys.argv) > 1 else 'standalone__tensor_product_equiv_equiformer__graph.s'
    open(out, 'w').write(build(opt))
```

```python
import re
from asmlib import *
from common import *

RING = 0
WR1 = 65536
RAW = WR1 + 20480
LDS_TOTAL = 163840
CNT = LDS_TOTAL - 1024
PGW = CNT + 256
TAB = PGW + 256
DUM = TAB + 384
RAWCAP = CNT - RAW
BCNT = 256 * 384
PROW = 1536
PAT = 0x7f007f00
assert RAW % 128 == 0 and CNT % 256 == 0
GRP = ['A0', 'B0x', 'B0y', 'B0z', 'B1x', 'B1y', 'B1z', 'B2z', 'A1', 'B2x', 'B2y']
HS = (4, 5, 3, 6, 8, 2)

class R: pass
_pl = [0]
OPT = {}

def alloc():
    r = R()
    v = Alloc(0, 256)
    r.ACC = v.get('acc', 64)
    r.AC = v.get('acache', 32)
    r.W = v.get('w', 80)
    r.BF0 = v.get('bf0', 4)
    r.BF1 = v.get('bf1', 16)
    r.CAR = v.get('car', 8)
    r.ST = v.get('stash', 30)
    r.V = v.get('V', 8)
    r.Y = v.get('Y', 2)
    r.B0 = v.get('b0'); r.B1 = v.get('b1')
    r.LO = v.get('laneoff')
    r.SL = v.get('sl'); r.PL = v.get('pl')
    r.EAB = v.get('eab'); r.YB = v.get('yb')
    r.PG = v.get('pg')
    r.T = v.get('t', 4)
    r.PA = r.T + 1
    r.nv = v.p
    s = Alloc(4, 102)
    r.sX = s.get('X', 4, 4); r.sX1 = s.get('X1', 4, 4); r.sEA = s.get('EA', 4, 4); r.sWS = s.get('WS', 4, 4)
    r.sOUT = r.sX
    r.sWave = s.get('wave'); r.sRing = s.get('ring')
    r.sM = s.get('meta', 6); r.sM2 = s.get('meta2', 5)
    r.sPx = s.get('Px'); r.sEaOn = r.sPx
    r.sC = s.get('C', 4)
    r.sPS = s.get('PS', 4)
    r.sA = s.get('A', 4)
    r.sSn = s.get('Sn'); r.sRn = s.get('Rn'); r.sDE = s.get('dE'); r.sDY = s.get('dY')
    r.sIt = s.get('it'); r.sIdx = s.get('idx')
    r.sHn = s.get('Hn'); r.sTog = s.get('tog')
    r.sYm = s.get('ym', 2, 2); r.sXm = s.get('xm', 2, 2)
    r.sTab = s.get('tab', 8)
    r.sT = s.get('t', 6, 2); r.sMn = r.sT + 5
    r.sEx = s.get('ex', 16, 4)
    r.sP = r.sEx
    r.sE0 = r.sEx; r.sE1 = r.sEx + 2; r.sEm0 = r.sEx + 4; r.sEm1 = r.sEx + 5
    r.sBk = 2; r.sCnt = 3
    r.sNon = s.get('nonce'); r.sFl = s.get('flags')
    r.sK1 = 3
    if OPT.get('stamps'):
        r.sStT = r.sT + 2 if False else s.get('stt', 2, 2); r.sSt = s.get('st', 10)
    r.ns = s.p
    return r

def NPW(): return 0 if OPT.get('no_pw') else 2 if OPT.get('w2', 1) else 3
def NE0(): return 5 if OPT.get('zt', 1) else 3
ZOFF = 90112
def acc(r, t, blk, i=0): return r.ACC + (blk * 2 + t) * 16 + i
def wreg(r, k, blk, i): return r.W + k * 16 + blk * 8 + i
def ac(r, s, t): return r.AC + s * 8 + t * 4
def bf(r, blk, s): return r.BF0 if blk == 0 else r.BF1 + 4 * s

def lbuild(r, s, half=False):
    o = []
    E_ = ac(r, s, 1); A0 = ac(r, s, 0); Y = r.Y + (s & 1)
    U = [(r.CAR, r.CAR + 1), (r.CAR + 2, r.CAR + 3)]; P = r.CAR + 4
    def unp(j):
        u = U[j & 1]
        o.append(f'v_lshlrev_b32 v{u[0]}, 16, v{E_+j}')
        o.append(f'v_and_b32 v{u[1]}, 0xffff0000, v{E_+j}')
    dpp = lambda d, k, u: f'v_mul_f32_dpp v{d}, v{Y}, v{u} row_newbcast:{k} row_mask:0xf bank_mask:0xf'
    if OPT.get('no_lb'): return []
    if OPT.get('zt', 1):
        for p in range(1 if half else 2):
            for q in range(2):
                j = 2*p + q; u = A0 + 2*p + 4*q; P = r.CAR + 4*q
                o += [dpp(P, 2*j, u), dpp(P+1, 2*j+1, u+1), dpp(P+2, 8+2*j, u), dpp(P+3, 9+2*j, u+1)]
            for q in range(2):
                j = 2*p + q; P = r.CAR + 4*q
                o += [f'v_cvt_pk_bf16_f32 v{A0+j}, v{P}, v{P+1}', f'v_cvt_pk_bf16_f32 v{E_+j}, v{P+2}, v{P+3}']
        return o
    nj = 2 if half else 4
    unp(0); unp(1)
    for j in range(nj):
        u = U[j & 1]
        o.append(dpp(P, 2*j, u[0])); o.append(dpp(P+1, 2*j+1, u[1]))
        o.append(dpp(P+2, 8+2*j, u[0])); o.append(dpp(P+3, 9+2*j, u[1]))
        if j + 2 < nj: unp(j + 2)
        o.append(f'v_cvt_pk_bf16_f32 v{A0+j}, v{P}, v{P+1}')
        o.append(f'v_cvt_pk_bf16_f32 v{E_+j}, v{P+2}, v{P+3}')
    return o

def chain(dst, a0, w0, neg=False, init=True):
    o = []
    if OPT.get('diag_noneg'): neg = False
    for i in range(1 if OPT.get('no_epi') else 8):
        if i == 0 and init:
            o.append(f'v_mul_f32_e64 v{dst}, v{a0}, -v{w0}' if neg else f'v_mul_f32 v{dst}, v{a0}, v{w0}')
        elif neg:
            o.append(f'v_fma_f32 v{dst}, v{a0+i}, -v{w0+i}, v{dst}')
        else:
            o.append(f'v_fmac_f32 v{dst}, v{a0+i}, v{w0+i}')
    return o

def epi(r, b, blk, phase, S=4):
    car = lambda j, k=blk: r.CAR + j * 2 + k
    tmp = lambda k=blk: r.T + 2 + k
    swap = lambda x, y: f'v_permlane32_swap_b32 v{x}, v{y}'
    add = lambda x, y: f'v_add_f32 v{y}, v{x}, v{y}'
    a = lambda aa: acc(r, aa >> 1, blk, (aa & 1) * 8)
    w = lambda k: wreg(r, k, blk, 0)
    if b == 0:
        ch = [chain(car(0), a(0), w(0)), chain(car(1), a(1), w(2)), chain(car(2), a(2), w(2)), chain(car(3), a(3), w(2), neg=True)]
    elif b == 1:
        ch = [chain(car(0), a(0), w(3)), chain(car(1), a(1), w(1)), chain(car(2), a(2), w(4), neg=True), chain(car(3), a(3), w(4), neg=True)]
    elif b == 2:
        ch = [chain(tmp(), a(0), w(3)), chain(car(2), a(1), w(4), init=False)]
    else:
        ch = [chain(tmp(), a(0), w(3)), chain(car(3), a(1), w(4), neg=True, init=False),
              chain(car(1), a(2), w(1), init=False), chain(car(0), a(3), w(4))]
    o = []
    if phase == 0 or not OPT.get('pk'):
        if b == 0:
            o = ch[0] + ch[1] + ch[2][:2] + [swap(car(0), car(1))] + ch[2][2:] + [add(car(0), car(1))] + ch[3] + ['s_nop 1', swap(car(2), car(3)), add(car(2), car(3))]
            outs = [(0, lambda k: car(1, k)), (1, lambda k: car(3, k))]
        elif b == 1:
            o = ch[0] + ch[1] + ch[2] + ch[3]; outs = []
        elif b == 2:
            o = ch[0] + ch[1][:2] + [swap(car(0), tmp())] + ch[1][2:] + [add(car(0), tmp())]
            outs = [(2, lambda k: tmp(k))]
        else:
            o = (ch[0] + ch[1][:2] + [swap(tmp(), car(2))] + ch[1][2:] + [add(tmp(), car(2))] + ch[2][:1] + [swap(car(3), tmp())] + ch[2][1:]
                 + [add(car(3), tmp())] + ch[3] + ['s_nop 1', swap(car(1), car(0)), add(car(1), car(0))])
            outs = [(3, lambda k: car(2, k)), (5, lambda k: tmp(k)), (4, lambda k: car(0, k))]
        if blk == 1 and outs:
            if phase == 0:
                o += [f's_set_gpr_idx_on s{r.sIdx}, gpr_idx(DST)', 's_nop 0']
                o += [f'v_cvt_pk_bf16_f32 v{r.ST+wi}, v{f(0)}, v{f(1)}' for wi, f in outs]
                o += ['s_set_gpr_idx_off']
            elif OPT.get('pgrp', 1) and S < 4:
                HOLD = r.BF1 + 12
                if b < 3: o += [f'v_cvt_pk_bf16_f32 v{HOLD+wi}, v{f(0)}, v{f(1)}' for wi, f in outs]
                else:
                    o += [f'v_cvt_pk_bf16_f32 v{f(0)}, v{f(0)}, v{f(1)}' for wi, f in outs]
                    reg = {wi: f(0) for wi, f in outs}
                    o += [f'ds_write2st64_b32 v{r.PA}, v{HOLD}, v{HOLD+1} offset0:0 offset1:1',
                          f'ds_write2st64_b32 v{r.PA}, v{HOLD+2}, v{reg[3]} offset0:2 offset1:3',
                          f'ds_write_b32 v{r.PA}, v{reg[4]} offset:1024',
                          's_mov_b64 exec, 0xffffffff', f'ds_write_b32 v{r.PA}, v{reg[5]} offset:1280', 's_mov_b64 exec, -1']
            else:
                o += [f'v_cvt_pk_bf16_f32 v{f(0)}, v{f(0)}, v{f(1)}' for wi, f in outs]
                full = [(wi, f) for wi, f in outs if wi != 5]
                if OPT.get('w2', 1) and len(full) == 2:
                    (w0_, f0), (w1_, f1) = full
                    o += [f'ds_write2st64_b32 v{r.PA}, v{f0(0)}, v{f1(0)} offset0:{w0_} offset1:{w1_}']
                    outs = [x for x in outs if x[0] == 5]
                for wi, f in outs:
                    if wi == 5: o += ['s_mov_b64 exec, 0xffffffff']
                    o += [f'ds_write_b32 v{r.PA}, v{f(0)} offset:{wi*256}']
                    if wi == 5: o += ['s_mov_b64 exec, -1']
                if OPT.get('no_pw'): o = [x if not x.startswith('ds_write') else f'ds_read_b32 v{r.PA}, v{r.PA}' if False else 'ds_swizzle_b32 v196, v196 offset:0x001F' if False else x.replace('ds_write', ';ds_write') for x in o]
        return o
    for c in ch: o += c
    if blk == 1:
        done = {0: [('A0', 0), ('B0x', 1), ('B0y', 2), ('B0z', 3)], 1: [('B1x', 0)], 2: [('B1y', -1), ('B2z', 2)],
                3: [('B1z', -1), ('B2y', 3), ('A1', 1), ('B2x', 0)]}[b]
        reg = lambda j, k: tmp(k) if j < 0 else car(j, k)
        o += [f'v_cvt_pk_bf16_f32 v{reg(j,0)}, v{reg(j,0)}, v{reg(j,1)}' for g, j in done]
        o += ['s_mov_b64 exec, 0xffffffff']
        o += [f'ds_write_b32 v{r.PA}, v{reg(j,0)} offset:{GRP.index(g)*128}' for g, j in done]
        o += ['s_not_b64 exec, exec']
        o += [f'ds_pk_add_bf16 v{r.PA}, v{reg(j,0)} offset:{GRP.index(g)*128}' for g, j in done]
        o += ['s_mov_b64 exec, -1']
    return o

def dma_m0(A, r, slot):
    if OPT.get('no_dma'): return
    A(f's_add_u32 m0, s{r.sRing}, {slot*2048}')

def dma(A, r, vreg, soff, half=False):
    if OPT.get('no_dma'): return 0
    A(f'buffer_load_dwordx4 v{vreg}, s[{r.sX}:{r.sX+3}], s{soff} offen {OPT.get("x_aux","")} lds')
    if half: return 1
    A(f'buffer_load_dwordx4 v{vreg+1}, s[{r.sX1}:{r.sX1+3}], s{soff} offen offset:1024 {OPT.get("x_aux","")} lds')
    return 2

def dma2(A, r, vreg, soff):
    if OPT.get('no_dma'): return 0
    A(f'buffer_load_dwordx4 v{vreg+1}, s[{r.sX1}:{r.sX1+3}], s{soff} offen offset:1024 {OPT.get("x_aux","")} lds')
    return 1

def bread(A, r, slot, s, half=False):
    n = 1 if half else 2
    for blk in range(2):
        for j in range(n):
            A(f'ds_read_b64_tr_b16 v[{bf(r,blk,s)+2*j}:{bf(r,blk,s)+2*j+1}], v{r.B0+blk} offset:{slot*2048+j*1024}')
    return 2 * n

def earead(A, r, s, half=False):
    if OPT.get('zt', 1):
        for q in range(2 if half else 4):
            d = ac(r, s, 0) + (0, 4, 2, 6)[q]
            A(f'ds_read_b64_tr_b16 v[{d}:{d+1}], v{r.EAB} offset:{s*512+(q>>1)*256+(q&1)*64}')
        return 2 if half else 4
    for j in range(1 if half else 2):
        A(f'ds_read_b64_tr_b16 v[{ac(r,s,1)+2*j}:{ac(r,s,1)+2*j+1}], v{r.EAB} offset:{s*512+j*256}')
    return 1 if half else 2

def yread(A, r, s):
    A(f's_mov_b64 exec, s[{r.sYm}:{r.sYm+1}]')
    A(f'ds_read_u16_d16_hi v{r.Y+(s&1)}, v{r.YB} offset:{s*128}')
    A('s_mov_b64 exec, -1')
    return 1

def srcread(A, r, j):
    A(f'v_add_u32 v{r.T}, s{r.sA+j}, v{r.SL}')
    if OPT.get('src2', 0):
        A(f'ds_read2_b32 v[{r.V+2*j}:{r.V+2*j+1}], v{r.T} offset0:0 offset1:16')
        return 1
    A(f'ds_read_u16 v{r.V+2*j}, v{r.T}')
    A(f'ds_read_u16 v{r.V+2*j+1}, v{r.T} offset:64')
    return 2

def srcfix(A, r, j):
    for q in range(2):
        if OPT.get('oob'): A(f'v_mov_b32 v{r.V+2*j+q}, 0x7f000000')
        elif OPT.get('small'):
            A(f'v_and_b32 v{r.V+2*j+q}, {OPT["small"]-1}, v{r.V+2*j+q}')
            A(f'v_lshl_add_u32 v{r.V+2*j+q}, v{r.V+2*j+q}, 10, v{r.LO}')
        elif OPT.get('src2', 0): A(f'v_mad_u32_u16 v{r.V+2*j+q}, v{r.V+2*j+q}, s{r.sK1}, v{r.LO} op_sel:[1,0,0,0]')
        else: A(f'v_lshl_add_u32 v{r.V+2*j+q}, v{r.V+2*j+q}, 10, v{r.LO}')

def eidxread(A, r):
    if OPT.get('kf') >= 'kf6':
        A(f'v_add_u32 v{r.T+1}, s{r.sRn}, v{r.PL}')
        A(f'ds_read_b32 v{r.T+2}, v{r.T+1}')
        A(f'ds_read_b32 v{r.T+3}, v{r.T+1} offset:256')
        return 2
    A(f'v_lshl_add_u32 v{r.T+1}, v{r.PL}, 2, s{r.sRn}')
    A(f'ds_read_b32 v{r.T+2}, v{r.T+1}')
    A(f'ds_read_b32 v{r.T+3}, v{r.T+1} offset:1024')
    return 2

def eadma(A, r):
    for q, (ex, em) in enumerate(((r.sE0, r.sEm0), (r.sE1, r.sEm1))):
        A(f's_mov_b32 m0, s{em}')
        A(f's_mov_b64 exec, s[{ex}:{ex+1}]')
        A(f'buffer_load_dwordx4 v{r.T+2+q}, s[{r.sEA}:{r.sEA+3}], 0 offen {OPT.get("ea_aux","")} lds')
    A('s_mov_b64 exec, -1')
    return 2

def mfma(r, t, blk, s, first, half=False):
    if OPT.get('no_mfma'): return 's_nop 0'
    d = acc(r, t, blk); b = bf(r, blk, s)
    c = '0' if first else f'v[{d}:{d+15}]'
    if half:
        return f'v_mfma_f32_32x32x8_bf16 v[{d}:{d+15}], v[{ac(r,s,t)}:{ac(r,s,t)+1}], v[{b}:{b+1}], {c}'
    return f'v_mfma_f32_32x32x16_bf16 v[{d}:{d+15}], v[{ac(r,s,t)}:{ac(r,s,t)+3}], v[{b}:{b+3}], {c}'

class Q:
    def __init__(self, mx): self.q = []; self.mx = mx
    def add(self, tag, n=1): self.q += [tag] * n
    def need(self, *tags):
        idx = [i for i, t in enumerate(self.q) if t in tags]
        if not idx: return None
        n = len(self.q) - 1 - idx[-1]
        self.q = self.q[idx[-1] + 1:]
        return min(n, self.mx)

def wait(A, vm=None, lg=None, force=False):
    p = []
    if vm is not None and not OPT.get('no_vmw'): p.append(f'vmcnt({vm})')
    if lg is not None and not OPT.get('no_lgkm'): p.append(f'lgkmcnt({lg})')
    if p: A('s_waitcnt ' + ' '.join(p))
    elif force: A('s_nop 0')

def split(ops, n):
    units = []; cur = None
    for o in ops:
        opens = o.startswith('s_set_gpr_idx_on') or (o.startswith('s_mov_b64 exec') and not o.endswith('-1'))
        closes = o.startswith('s_set_gpr_idx_off') or o == 's_mov_b64 exec, -1'
        if cur is None and opens: cur = [o]
        elif cur is not None:
            cur.append(o)
            if closes: units.append(cur); cur = None
        else: units.append([o])
    tot = sum(len(u) for u in units); out = [[] for _ in range(n)]; k = 0; done = 0
    for u in units:
        while k < n - 1 and done >= (k + 1) * tot / n: k += 1
        out[k] += u; done += len(u)
    return out

def item(A, r, H, phase, opt):
    S = (H + 1) // 2
    ishalf = lambda s: bool(H & 1) and s == S - 1
    A(f'ITEM_{phase}_{H}:')
    lg = Q(15); vm = Q(63)
    lg.add('B0', 4); lg.add('E0', NE0())
    for c in (1, 2, 3): vm.add(f'C{c}', 2)
    n = 4 * S
    def emit(ops):
        for o in ops:
            A(o)
            if o.startswith('ds_'): lg.add('P')
    if S > 1: lg.add('Y1', yread(A, r, 1))
    for s in range(1, S): lg.add(f'E{s}', earead(A, r, s, ishalf(s)))
    vfree = {j: (3*S + j - 4 if (j < S and 3*S + j >= 4) else -1) for j in range(4)}
    info = nextinfo(r, phase)
    if phase == 1:
        info[1:2] = []
        info[1:1] = [f'v_mov_b32 v{r.PA}, v{r.PL}'] if False else ['s_nop 0']
        info[3:3] = [f's_movrels_b32 s{r.sPx}, s{r.sM2}', f's_and_b32 s{r.sT+4}, s{r.sPx}, 0x70', f's_andn2_b32 s{r.sPx}, s{r.sPx}, 0x70',
                     f'v_xor_b32 v{r.PA}, s{r.sT+4}, v{r.PL}', f'v_add_u32 v{r.PA}, s{r.sPx}, v{r.PA}']
    def put_info():
        for o in info: A(o)
        for j in range(4):
            if vfree[j] < 0: lg.add(f'V{j}', srcread(A, r, j))
    if S == 1: put_info()
    wait(A, lg=lg.need('E0'))
    for o in lbuild(r, 0, ishalf(0)): A(o)
    if S > 2: lg.add('Y2', yread(A, r, 2))
    else: A('s_nop 0')
    def xorv3(steps):
        A(f's_mov_b64 exec, s[{r.sXm}:{r.sXm+1}]')
        for s in steps:
            for j in range(2 if ishalf(s) else 4):
                A(f'v_xor_b32 v{ac(r,s,1)+j}, 0x80008000, v{ac(r,s,1)+j}')
        A('s_mov_b64 exec, -1')
    for k in range(8):
        b, blk = k >> 1, k & 1
        if k == 0:
            fills = []
            for s in range(S):
                fills += split(lbuild(r, s + 1, ishalf(s + 1)), 2) if s + 1 < S else [[], []]
        else:
            fills = split(epi(r, (k - 1) >> 1, (k - 1) & 1, phase, S), 2 * S)
        if OPT.get('kprio') and k == OPT['kprio'][0]: A(f's_setprio {OPT["kprio"][1]}')
        started = False
        def fill(i):
            nonlocal started
            if k > 0 and fills[i] and not started:
                A.pad_since_mfma(acc(r, 0, (k - 1) & 1), 12); started = True
            emit(fills[i])
        for s in range(S):
            g = b * S + s; hf = ishalf(s)
            if blk == 0:
                tags = [f'B{g}']
                if k == 0 and s + 1 < S: tags += [f'E{s+1}', f'Y{s+1}']
                if g + 4 >= n: tags.append(f'V{g+4-n}')
                if k == 6 and s == S - 1 and (S == 1 or s > 0): tags.append(f'Z{s}')
                wait(A, vm=vm.need(f'C{g+1}') if s + 1 < S else None, lg=lg.need(*tags))
                if k == 6 and s == S - 1:
                    xorv3([s])
                    if S == 1: A('s_nop 0')
            spread = OPT.get('spread', 0)
            cn = g + 4
            if cn < n: bn, sn = divmod(cn, S); dv, dso, dh = r.V + 2*sn, r.sC + bn, ishalf(sn)
            else: dv, dso, dh = r.V + 2*(cn - n), r.sPS + (cn - n), False
            late = spread == 2 and b < 3 and (cn < n or S <= 2)
            if blk == 0 and spread:
                dma_m0(A, r, g % 4)
                if cn >= n: srcfix(A, r, cn - n)
            if blk == 1 and late and not dh: dma_m0(A, r, g % 4)
            A(mfma(r, 0, blk, s, s == 0, hf))
            if blk == 0 and spread: vm.add(f'C{cn}', dma(A, r, dv, dso, True))
            if blk == 1 and late and not dh: vm.add(f'C{cn}', dma2(A, r, dv, dso))
            fill(2 * s)
            if blk == 0 and (not spread or (not dh and not late and any('gpr_idx' in o for o in fills[2*s]))): dma_m0(A, r, g % 4)
            A(mfma(r, 1, blk, s, s == 0 and b != 3, hf))
            if blk == 0:
                if spread:
                    if not dh and not late: vm.add(f'C{cn}', dma2(A, r, dv, dso))
                else:
                    if cn >= n: srcfix(A, r, cn - n)
                    vm.add(f'C{cn}', dma(A, r, dv, dso, dh))
                if s + 1 < S: lg.add(f'B{g+1}', bread(A, r, (g + 1) % 4, s + 1, ishalf(s + 1)))
                for j in range(4):
                    if vfree[j] == g and not (late and not dh): lg.add(f'V{j}', srcread(A, r, j))
                if k == 2 and s == 0 and phase == 0:
                    wait(A, lg=lg.need('X'))
                    vm.add('EA', eadma(A, r))
            else:
                for j in range(4):
                    if vfree[j] == g and late and not dh: lg.add(f'V{j}', srcread(A, r, j))
                if k == 5:
                    for j in range(2 if hf else 4):
                        A(f'ds_swizzle_b32 v{ac(r,s,1)+j}, v{ac(r,s,1)+j} offset:0x401F')
                        lg.add(f'Z{s}')
                if k == 1 and s == 0 and phase == 0: lg.add('X', eidxread(A, r))
                if s == max(S - 2, 0):
                    gn = (b + 1) * S
                    wait(A, vm=vm.need(f'C{gn}', *(['EA'] if k == 7 else [])))
                    lg.add(f'B{gn}', bread(A, r, gn % 4, 0, ishalf(0) and gn < n))
                if k == 7 and s == S - 1:
                    A(f'v_add_u32 v{r.EAB}, s{r.sDE}, v{r.EAB}')
                    A(f'v_add_u32 v{r.YB}, s{r.sDY}, v{r.YB}')
                    if OPT.get('fair') == 1 or (OPT.get('fair') in (3, 4) and phase == 1): A(f'ds_read_b32 v{r.T}, v{r.PG} offset:16')
                    earead(A, r, 0); yread(A, r, 0)
            fill(2 * s + 1)
            if k == 0 and s == S - 1 and S > 1: put_info()
            if k == 0 and s + 1 < S:
                if s + 3 < S: lg.add(f'Y{s+3}', yread(A, r, s + 3))
                else: A('s_nop 0')
            if k == 5 and s == S - 1 and S > 1:
                wait(A, lg=lg.need(*[f'Z{x}' for x in range(S - 1)]))
                xorv3(range(S - 1))
        if blk == 1: stamp(A, r, opt, 'sub')
    if OPT.get('endprio') is not None: A(f's_setprio {OPT["endprio"]}')
    A.pad_since_mfma(acc(r, 0, 1), 12)
    emit(epi(r, 3, 1, phase, S))
    stamp(A, r, opt, 'item')
    A(f's_add_u32 s{r.sIt}, s{r.sIt}, 1')
    if phase == 0: A(f's_add_u32 s{r.sIdx}, s{r.sIdx}, 6')
    last1 = OPT.get('last1', 1)
    A(f's_cmp_ge_u32 s{r.sIt}, {4 if last1 else 4 + phase}')
    A('s_cbranch_scc1 ' + ('LAST0' if phase == 0 else 'LAST1' if last1 else 'TAIL'))
    dispatch(A, r, phase, NE0() + (4 if OPT.get('pgrp', 1) and S < 4 else NPW()) * phase)

def nextinfo(r, phase, first=False):
    t = r.sT; o = []
    if not first:
        o += [f's_mov_b32 m0, s{r.sIt}', 's_nop 0', f's_movrels_b32 s{r.sMn}, s{r.sM+1}']
    o += [f's_bfe_u32 s{r.sSn}, s{r.sMn}, 0x30012',
          f's_mov_b32 m0, s{r.sSn}',
          f's_and_b32 s{t}, s{r.sMn}, 0x3ffff',
          f's_movrels_b32 s{t+2}, s{r.sTab-1}',
          f's_movrels_b32 s{t+3}, s{r.sTab+3}',
          f's_sub_u32 s{r.sDE}, s{t}, s{r.sRn}',
          f's_mov_b32 s{r.sRn}, s{t}',
          f's_lshr_b32 s{r.sHn}, s{r.sMn}, 28',
          f's_lshl_b32 s{t+1}, s{r.sSn}, 9',
          f's_add_u32 s{t}, s{t}, s{t+1}',
          f's_sub_u32 s{r.sDY}, s{t}, s{r.sA}',
          f's_mov_b32 s{r.sA}, s{t}']
    for j in range(1, 4):
        o += [f's_bfe_u32 s{t}, s{t+2}, {(10 << 16) | ((j-1)*10)}',
              f's_add_u32 s{r.sA+j}, s{r.sA}, s{t}',
              f's_bfe_u32 s{r.sPS+j}, s{t+3}, {(10 << 16) | ((j-1)*10)}']
    if phase == 0:
        o += [f's_and_b32 s{t}, s{r.sSn}, s{r.sEaOn}',
              f's_cselect_b32 s{r.sE0}, -1, 1',
              f's_cselect_b32 s{r.sEm0}, s{r.sRn}, {DUM}',
              f's_cmp_ge_u32 s{t}, 2',
              f's_cselect_b32 s{r.sE0+1}, -1, 0',
              f's_add_u32 s{r.sEm1}, s{r.sRn}, 1024',
              f's_cmp_ge_u32 s{t}, 4',
              f's_cselect_b32 s{r.sE1+1}, -1, 0',
              f's_cmp_ge_u32 s{t}, 3',
              f's_cselect_b32 s{r.sE1}, -1, 1',
              f's_cselect_b32 s{r.sEm1}, s{r.sEm1}, {DUM}']
    return o

def tables():
    offs = []; comps = []
    for S in range(1, 5):
        offs.append(sum(((j % S) * 128) << (10 * (j - 1)) for j in range(1, 4)))
        comps.append(sum(((j // S) * 256 + 128) << (10 * (j - 1)) for j in range(1, 4)))
    return offs + comps

def dispatch(A, r, phase, lgk):
    if OPT.get('fair') == 2 or (OPT.get('fair') in (3, 4) and phase == 0):
        _pl[0] += 1
        A(f's_add_u32 s{r.sTog}, s{r.sTog}, 4')
        if OPT['fair'] == 4: A(f's_bitcmp1_b32 s{r.sWave}, 2')
        else:
            A(f's_xor_b32 s{r.sT}, s{r.sTog}, s{r.sWave}')
            A(f's_bitcmp1_b32 s{r.sT}, 2')
        A('s_setprio 1')
        A(f's_cbranch_scc1 PRIO_{_pl[0]}')
        A('s_setprio 0')
        A(f'PRIO_{_pl[0]}:')
    elif OPT.get('fair'):
        _pl[0] += 1
        A(f's_waitcnt lgkmcnt({lgk})')
        A(f'v_readfirstlane_b32 s{r.sT}, v{r.T}')
        A(f's_add_u32 s{r.sTog}, s{r.sTog}, 1')
        A(f'v_mov_b32 v{r.T}, s{r.sTog}')
        A(f's_cmp_le_u32 s{r.sTog}, s{r.sT}')
        A(f'ds_write2_b32 v{r.PG}, v{r.T}, v{r.T} offset0:0 offset1:8')
        A('s_setprio 1')
        A(f's_cbranch_scc1 PRIO_{_pl[0]}')
        A('s_setprio 0')
        A(f'PRIO_{_pl[0]}:')
    for H in HS[:-1]:
        A(f's_cmp_eq_u32 s{r.sHn}, {H}')
        A(f's_cbranch_scc1 ITEM_{phase}_{H}')
    A(f's_branch ITEM_{phase}_{HS[-1]}')

DEFPTS = ['start','B1','B2','B3','item0','phase1','tail','B4','gemm','end']
def stamp(A, r, opt, k):
    if not opt.get('stamps'): return
    if isinstance(k, int): k = DEFPTS[k]
    pts = opt.get('pts', DEFPTS)
    if opt.get('items') or opt.get('sub'): pts = ['item0']
    if k in ('sub', 'item'):
        if not opt.get('sub' if k == 'sub' else 'items'): return
        _pl[0] += 1
        A(f's_add_u32 s{r.sCnt}, s{r.sCnt}, 1')
        A(f's_cmp_gt_u32 s{r.sCnt}, {opt.get("sub", 1)+8}')
        A(f's_cbranch_scc1 SUBST_{_pl[0]}')
        A(f's_{opt["stamps"]} s[{r.sStT}:{r.sStT+1}]')
        for i in range(1, 9): A(f's_mov_b32 s{r.sSt+i}, s{r.sSt+i+1}')
        A('s_waitcnt lgkmcnt(0)')
        A(f's_mov_b32 s{r.sSt+9}, s{r.sStT}')
        A(f'SUBST_{_pl[0]}:')
        return
    if k not in pts: return
    A(f's_{opt["stamps"]} s[{r.sStT}:{r.sStT+1}]')
    A('s_waitcnt lgkmcnt(0)')
    A(f's_mov_b32 s{r.sSt+pts.index(k)}, s{r.sStT}')

def stamp_out(A, r, opt):
    if not opt.get('stamps'): return
    t = r.sT
    A(f's_lshl_b32 s{t}, s{r.sBk}, 3')
    A(f's_add_u32 s{t}, s{t}, s{r.sWave}')
    A(f's_lshl_b32 s{t}, s{t}, 6')
    A(f's_add_u32 s{t}, s{t}, {WS_STAMP + 65536}')
    A(f's_mov_b32 s{r.sWS+2}, {WS_STAMP + 65536 + 2048*64}')
    A('v_mov_b32 v0, 0')
    for k in range(10):
        A(f'v_mov_b32 v1, s{r.sSt+k}')
        A(f'buffer_store_dword v1, v0, s[{r.sWS}:{r.sWS+3}], s{t} offen offset:{4*k}')

def startup(A, r, opt):
    t = r.sT
    A(f's_load_dwordx2 s[{r.sP}:{r.sP+1}], s[0:1], 0')
    A(f's_load_dwordx2 s[{r.sP+2}:{r.sP+3}], s[0:1], 16')
    A(f's_load_dwordx2 s[{r.sP+6}:{r.sP+7}], s[0:1], 88')
    stamp(A, r, opt, 0)
    L = 1; W0 = 8; YS = 16; RK = 32; INF = 40; X0 = 48; IDX = 52; MX = 53; CT = 54
    A(f'v_lshrrev_b32 v2, 6, v0')
    A(f'v_and_b32 v{L}, 63, v0')
    A(f'v_readfirstlane_b32 s{r.sWave}, v2')
    A(f'v_lshrrev_b32 v2, 5, v{L}')
    A(f'v_mul_u32_u24 v2, {CELL}, v2')
    A(f'v_and_b32 v{IDX}, 31, v{L}')
    A(f'v_lshl_add_u32 v{X0}, v{IDX}, 2, v2')
    A(f'v_lshl_add_u32 v{X0+1}, v{IDX}, 3, v2')
    A(f'v_lshlrev_b32 v{X0+2}, 4, v{L}')
    A(f's_mul_i32 s{t}, s2, {G1P*CELL}')
    A(f's_mul_i32 s{t+1}, s{r.sWave}, {16*CELL}')
    A(f's_add_u32 s{t}, s{t}, s{t+1}')
    A(f's_add_u32 s{t+1}, s{t}, {4*2*CELL}')
    A(f's_lshl_b32 s{r.sRing}, s{r.sWave}, 13')
    A(f'v_lshlrev_b32 v{r.PL}, 2, v{L}')
    A(f'v_mov_b32 v{MX}, 0')
    A(f'v_add_u32 v{CT}, {CNT}, v{r.PL}')
    A(f'ds_write_b32 v{CT}, v{MX}')
    A(f'ds_write_b32 v{CT}, v{MX} offset:256')
    A(f's_mov_b32 s{r.sXm}, 0xffff')
    A(f's_mov_b32 s{r.sXm+1}, 0xffff')
    A('s_waitcnt lgkmcnt(0)')
    stamp(A, r, opt, 'karg')
    srd(A, r.sWS, r.sP+6, WS_USED)
    for i in range(8):
        so = t if i < 4 else t + 1
        A(f'buffer_load_dword v{W0+i}, v{X0}, s[{r.sWS}:{r.sWS+3}], s{so} offen offset:{(i%4)*2*CELL}')
    A(f's_mov_b64 exec, s[{r.sXm}:{r.sXm+1}]')
    for i in range(8):
        so = t if i < 4 else t + 1
        A(f'buffer_load_dwordx2 v[{YS+2*i}:{YS+2*i+1}], v{X0+1}, s[{r.sWS}:{r.sWS+3}], s{so} offen offset:{(i%4)*2*CELL+128}')
    A('s_mov_b64 exec, -1')
    A('s_barrier')
    stamp(A, r, opt, 1)
    A(f's_mul_i32 s{t+2}, s{r.sWave}, 5120')
    A(f's_add_u32 s{t+3}, s{t+2}, {WS_WRAD}')
    A(f's_cmp_ge_u32 s{r.sWave}, 4')
    A(f's_cselect_b32 s{t+4}, {WR1-20480}, 0')
    A(f's_add_u32 s{t+2}, s{t+2}, s{t+4}')
    for i in range(5):
        A(f's_add_u32 m0, s{t+2}, {i*1024}')
        A(f's_add_u32 s{t+4}, s{t+3}, {i*1024}')
        A(f'buffer_load_dwordx4 v{X0+2}, s[{r.sWS}:{r.sWS+3}], s{t+4} offen lds')
    stamp(A, r, opt, 'loads')
    A(f's_sub_u32 s{r.sP}, s{r.sP}, 128')
    A(f's_subb_u32 s{r.sP+1}, s{r.sP+1}, 0')
    srd(A, r.sX, r.sP, N*1024)
    A(f's_sub_u32 s{r.sP}, s{r.sP}, 1024')
    A(f's_subb_u32 s{r.sP+1}, s{r.sP+1}, 0')
    srd(A, r.sX1, r.sP, N*1024 + 1024)
    srd(A, r.sEA, r.sP+2, E*32)
    for i in range(4): A(f'v_mov_b32 v{4+i}, {PAT}')
    A(f'v_lshlrev_b32 v2, 4, v0')
    A(f'v_add_u32 v3, {RAW}, v2')
    nfull = RAWCAP // 8192
    for i in range(nfull):
        if i == 8: A('v_add_u32 v3, 0x10000, v3')
        A(f'ds_write_b128 v3, v[4:7] offset:{(i % 8)*8192}')
    rem = RAWCAP - nfull * 8192
    if rem:
        A(f'v_min_u32 v2, {rem-16}, v2')
        A(f'v_add_u32 v2, {RAW + nfull*8192}, v2')
        A('ds_write_b128 v2, v[4:7]')
    stamp(A, r, opt, 'prefill')
    A(f'v_lshrrev_b32 v2, 5, v{L}')
    A(f'v_bfe_u32 v3, v{L}, 2, 2')
    A(f'v_and_b32 v4, 3, v{L}')
    A(f'v_bfe_u32 v5, v{L}, 4, 1')
    A(f'v_lshlrev_b32 v6, 9, v2')
    A(f'v_lshl_add_u32 v6, v3, 7, v6')
    A(f'v_lshl_add_u32 v6, v5, 5, v6')
    A(f'v_lshl_add_u32 v6, v4, 3, v6')
    A(f'v_lshrrev_b32 v7, 1, v3')
    A(f'v_lshl_add_u32 v6, v7, 6, v6')
    A(f'v_add_u32 v{r.B0}, s{r.sRing}, v6')
    A(f'v_xor_b32 v{r.B1}, 64, v{r.B0}')
    A(f'v_lshlrev_b32 v6, 7, v2')
    A(f'v_lshl_add_u32 v6, v3, 5, v6')
    A(f'v_lshl_add_u32 v{r.EAB}, v4, 3, v6')
    A(f'v_lshl_add_u32 v6, v2, 2, v4')
    A(f'v_bfe_u32 v7, v{L}, 2, 1')
    A(f'v_lshl_add_u32 v6, v7, 3, v6')
    A(f'v_lshlrev_b32 v6, 3, v6')
    A(f'v_bfe_u32 v7, v{L}, 3, 1')
    A(f'v_add_u32 v5, 1, v5')
    A(f'v_mul_u32_u24 v7, v7, v5')
    A(f'v_lshl_add_u32 v{r.YB}, v7, 1, v6')
    A(f'v_and_b32 v6, 0x38, v{L}')
    A(f'v_add_u32 v{r.SL}, 6, v6')
    A(f'v_lshrrev_b32 v6, 2, v{L}')
    A(f'v_lshrrev_b32 v7, 4, v{L}')
    A(f'v_xor_b32 v6, v6, v7')
    A(f'v_and_b32 v6, 1, v6')
    A(f'v_lshlrev_b32 v6, 6, v6')
    A(f'v_lshl_add_u32 v{r.LO}, v4, 4, v6')
    for i in range(2): A(f'v_mov_b32 v{r.Y+i}, 1.0')
    A(f's_mov_b32 s{r.sYm}, 0xffffff00')
    A(f's_mov_b32 s{r.sYm+1}, 0xffffff00')
    for i, w in enumerate(tables()): A(f's_mov_b32 s{r.sTab+i}, {w}')
    A(f's_mov_b32 s{r.sPS}, 128')
    A(f's_mov_b32 s{r.sEaOn}, -1')
    A(f's_and_b32 s{t+2}, s{r.sWave}, 3')
    A(f's_lshl_b32 s{t+2}, s{t+2}, 2')
    A(f's_lshr_b32 s{t+3}, s{r.sWave}, 2')
    A(f's_add_u32 s{t+2}, s{t+2}, s{t+3}')
    A(f's_lshl_b32 s{t+2}, s{t+2}, 4')
    A(f's_add_u32 s{t+2}, s{t+2}, {PGW}')
    A(f'v_mov_b32 v{r.PG}, s{t+2}')
    for x in (r.sTog, r.sIt, r.sIdx, r.sRn, r.sA, r.sCnt): A(f's_mov_b32 s{x}, 0')
    for b in range(4): A(f's_mov_b32 s{r.sC+b}, {b*256+128}')
    A(f's_mov_b32 s{t+5}, {CNT}')
    A(f'v_mov_b32 v3, 1')
    for i in range(8):
        A(f's_waitcnt vmcnt({7-i+8+5})')
        if i == 0: stamp(A, r, opt, 'cell0')
        A(f'v_mov_b32_dpp v2, v{W0+i} row_newbcast:0 row_mask:0xf bank_mask:0xf')
        A(f'v_bfe_u32 v{INF+i}, v{W0+i}, 19, 6')
        A(f'v_lshl_add_u32 v{INF+i}, v{INF+i}, 2, s{t+5}')
        A(f'v_mov_b32_dpp v2, v2 row_bcast:15 row_mask:0xa bank_mask:0xf')
        A(f'v_lshrrev_b32 v2, 25, v2')
        A(f'v_cmp_lt_u32 s[{r.sEx+2*i}:{r.sEx+2*i+1}], v{IDX}, v2')
        A(f'v_max_u32 v{MX}, v{MX}, v2')
        A(f's_mov_b64 exec, s[{r.sEx+2*i}:{r.sEx+2*i+1}]')
        A(f'ds_add_rtn_u32 v{RK+i}, v{INF+i}, v3')
        A('s_mov_b64 exec, -1')
    A('s_waitcnt vmcnt(0)')
    A(f'v_cmp_lt_u32 vcc, 16, v{MX}')
    A('s_cmp_eq_u64 vcc, 0')
    A('s_cbranch_scc1 NO_UPPER')
    for i in range(8):
        so = t if i < 4 else t + 1
        A(f's_andn2_b64 exec, s[{r.sEx+2*i}:{r.sEx+2*i+1}], s[{r.sXm}:{r.sXm+1}]')
        A(f's_cbranch_execz NO_UP{i}')
        A(f'buffer_load_dwordx2 v[{YS+2*i}:{YS+2*i+1}], v{X0+1}, s[{r.sWS}:{r.sWS+3}], s{so} offen offset:{(i%4)*2*CELL+128}')
        A(f'NO_UP{i}:')
    A('s_mov_b64 exec, -1')
    A('NO_UPPER:')
    A(f'v_cmp_lt_u32 vcc, {CAP}, v{MX}')
    A(f'v_mov_b32 v2, {CNT+63*4}')
    A(f'v_mov_b32 v4, 1000')
    A('s_mov_b64 exec, vcc')
    A('ds_write_b32 v2, v4')
    A('s_mov_b64 exec, -1')
    stamp(A, r, opt, 'hist')
    A(f's_waitcnt lgkmcnt(0)')
    A('s_barrier')
    stamp(A, r, opt, 2)
    A(f'ds_read_b32 v4, v{CT}')
    for i in range(20):
        A(f'ds_read_b128 v[{r.W+4*i}:{r.W+4*i+3}], v{X0+2} offset:{RING+i*1024}')
    A(f'v_cmp_gt_u32 s[{t+2}:{t+3}], {NPB}, v{L}')
    A('s_waitcnt lgkmcnt(15)')
    A(f'v_cmp_lt_u32 vcc, 64, v4')
    A(f'v_add_u32 v5, 15, v4')
    A(f'v_lshrrev_b32 v5, 4, v5')
    A(f'v_med3_u32 v5, v5, 1, 4')
    A(f'v_mul_u32_u24 v6, 640, v5')
    A(f'v_max_u32 v6, {PROW}, v6')
    A(f'v_cndmask_b32 v6, 0, v6, s[{t+2}:{t+3}]')
    A(f's_cmp_lg_u64 vcc, 0')
    A('s_cbranch_scc1 SLOW')
    A(f'v_mov_b32 v7, v6')
    fillers = [f'v_add_u32 v2, 7, v4', f'v_lshrrev_b32 v2, 3, v2', f'v_max_u32 v2, 2, v2', f'v_cmp_eq_u32 vcc, 7, v2',
               f'v_lshlrev_b32 v5, 18, v5', f'v_lshl_or_b32 v5, v{L}, 21, v5', f'v_addc_co_u32 v2, vcc, 0, v2, vcc',
               f'v_lshl_or_b32 v5, v2, 28, v5', f'v_med3_u32 v2, v2, 3, 6', f'v_cndmask_b32 v2, 0, v2, s[{t+2}:{t+3}]',
               f'v_mov_b32 v{X0}, 63', f's_mov_b32 s{t+4}, 0']
    for i, d in enumerate(['row_shr:1 row_mask:0xf', 'row_shr:2 row_mask:0xf', 'row_shr:4 row_mask:0xf', 'row_shr:8 row_mask:0xf',
                           'row_bcast:15 row_mask:0xa', 'row_bcast:31 row_mask:0xc']):
        A(fillers[2*i]); A(fillers[2*i+1])
        A(f'v_add_u32_dpp v7, v7, v7 {d} bank_mask:0xf')
    A(f'v_cmp_eq_u32 vcc, 6, v2')
    A(f'v_readlane_b32 s{t}, v7, 63')
    A(f'v_sub_u32 v7, v7, v6')
    A(f'v_add_u32 v7, {RAW}, v7')
    A(f'v_or_b32 v6, v5, v7')
    A(f's_cmp_gt_u32 s{t}, {RAWCAP}')
    A('s_cbranch_scc1 SLOW')
    for i in range(8):
        A(f'ds_bpermute_b32 v{INF+i}, v{INF+i}, v6')
    for cl in (6, 5, 4, 3):
        A(f'v_mbcnt_lo_u32_b32 v5, vcc_lo, 0')
        A(f'v_mbcnt_hi_u32_b32 v5, vcc_hi, v5')
        A(f'v_add_u32 v5, s{t+4}, v5')
        A(f'v_cndmask_b32 v{X0}, v{X0}, v5, vcc')
        if cl > 3:
            A(f's_bcnt1_i32_b64 s{t+5}, vcc')
            A(f'v_cmp_eq_u32 vcc, {cl-1}, v2')
            A(f's_add_u32 s{t+4}, s{t+4}, s{t+5}')
            A('s_nop 0')
    A(f'v_lshrrev_b32 v2, 3, v{X0}')
    A(f'v_and_b32 v3, 1, v2')
    A(f'v_mul_u32_u24 v3, 7, v3')
    A(f'v_xor_b32 v{X0}, v{X0}, v3')
    A(f'v_and_b32 v3, 7, v{X0}')
    A(f'v_lshlrev_b32 v3, 13, v3')
    A(f'v_mul_u32_u24 v2, {PROW}, v2')
    A(f'v_lshlrev_b32 v4, 4, v{L}')
    A(f'v_and_b32 v5, 128, v4')
    A(f'v_add3_u32 v2, v2, v3, v5')
    A(f'v_xor_b32 v3, v4, v7')
    A(f'v_and_b32 v3, 128, v3')
    A(f'v_add_u32 v3, v3, v7')
    A(f'v_and_b32 v4, 0x70, v4')
    A(f'v_or_b32 v5, v3, v4')
    for rr in range(5):
        A(f's_add_u32 s{t}, s{r.sWave}, {rr*8}')
        A(f'v_cmp_eq_u32 vcc, s{t}, v{X0}')
        A(f's_ff1_i32_b64 s{t+1}, vcc')
        A(f'v_readlane_b32 s{r.sM+rr}, v6, s{t+1}')
        A(f'v_readlane_b32 s{r.sM2+rr}, v5, s{t+1}')
    A(f'v_lshlrev_b32 v4, 3, v{L}')
    A(f'v_add_u32 v4, {TAB}, v4')
    A(f's_mov_b32 exec_hi, 0xff')
    A('ds_write_b64 v4, v[2:3]')
    A(f's_mov_b32 exec_hi, -1')
    A(f's_mov_b32 s{r.sM+5}, s{r.sM}')
    A(f's_mov_b32 s{r.sMn}, s{r.sM}')
    stamp(A, r, opt, 'meta')
    A('s_waitcnt vmcnt(0) lgkmcnt(0)')
    for i in range(8):
        A(f'v_and_b32 v2, 0x3ffff, v{INF+i}')
        A(f'v_bfe_u32 v3, v{INF+i}, 18, 3')
        A(f'v_lshlrev_b32 v4, 5, v{W0+i}')
        A(f'v_lshl_add_u32 v3, v3, 9, v2')
        A(f'v_and_b32 v4, 0xffffe0, v4')
        A(f'v_lshl_add_u32 v2, v{RK+i}, 5, v2')
        A(f'v_lshl_add_u32 v3, v{RK+i}, 3, v3')
        A(f'v_or_b32 v5, 16, v4')
        A(f's_mov_b64 exec, s[{r.sEx+2*i}:{r.sEx+2*i+1}]')
        A(f'ds_write2_b32 v2, v4, v5 offset0:0 offset1:4')
        A(f'ds_write_b64 v3, v[{YS+2*i}:{YS+2*i+1}]')
        A('s_mov_b64 exec, -1')
    for o in nextinfo(r, 0, first=True): A(o)
    A('s_waitcnt lgkmcnt(0)')
    A('s_barrier')
    stamp(A, r, opt, 3)
    eidxread(A, r)
    for j in range(4): srcread(A, r, j)
    A(f'v_add_u32 v{r.EAB}, s{r.sDE}, v{r.EAB}')
    A(f'v_add_u32 v{r.YB}, s{r.sDY}, v{r.YB}')
    A('s_waitcnt lgkmcnt(8)')
    eadma(A, r)
    A('s_waitcnt lgkmcnt(0)')
    for j in range(4):
        dma_m0(A, r, j)
        srcfix(A, r, j)
        dma(A, r, r.V + 2*j, r.sPS + j)
    stamp(A, r, opt, 'dma0')
    A(f'v_mov_b32 v{r.T}, 0')
    A('s_waitcnt vmcnt(6)')
    stamp(A, r, opt, 4)
    bread(A, r, 0, 0)
    earead(A, r, 0); yread(A, r, 0)
    dispatch(A, r, 0, NE0())

def between(A, r, opt):
    t = r.sT
    A('LAST0:')
    A(f's_cmp_eq_u32 s{r.sIt}, 5')
    A('s_cbranch_scc1 TO_PHASE1')
    for x in (r.sX, r.sX1):
        A(f's_add_u32 s{x}, s{x}, 128')
        A(f's_addc_u32 s{x+1}, s{x+1}, 0')
    for b in range(4): A(f's_mov_b32 s{r.sC+b}, {b*256}')
    A(f's_mov_b32 s{r.sEaOn}, 0')
    pf1 = OPT.get('pf1')
    if pf1:
        if pf1 == 'chip':
            A(f's_lshl_b32 s{t}, s2, 3')
            A(f's_add_u32 s{t}, s{t}, s{r.sWave}')
            A(f's_mul_i32 s{t}, s{t}, {20*256}')
            A(f'v_lshlrev_b32 v{r.T+1}, 6, v{r.PL}')
            A(f's_mov_b64 exec, {(1 << 20) - 1}')
        else:
            A(f's_lshr_b32 s{t}, s2, 3')
            A(f's_lshl_b32 s{t}, s{t}, 3')
            A(f's_add_u32 s{t}, s{t}, s{r.sWave}')
            A(f's_mul_i32 s{t}, s{t}, {pf1*1024}')
            A(f'v_lshlrev_b32 v{r.T+1}, 8, v{r.PL}')
            A(f's_mov_b64 exec, {(1 << pf1) - 1}')
        A(f's_mov_b32 m0, {DUM}')
        A(f's_add_u32 s{t}, s{t}, 128')
        A(f'buffer_load_dword v{r.T+1}, s[{r.sX}:{r.sX+3}], s{t} offen lds')
        A('s_mov_b64 exec, -1')
    dispatch(A, r, 0, NE0())
    A('TO_PHASE1:')
    if OPT.get('fair') in (3, 4): A(f'ds_read_b32 v{r.T}, v{r.PG} offset:16')
    A(f'v_lshlrev_b32 v{r.T+1}, 2, v{r.PL}')
    A(f'v_add_u32 v{r.T+1}, {WR1}, v{r.T+1}')
    for i in range(20):
        A(f'ds_read_b128 v[{r.W+4*i}:{r.W+4*i+3}], v{r.T+1} offset:{i*1024}')
    if OPT.get('pk'): A(f'v_and_b32 v{r.PL}, 127, v{r.PL}')
    for b in range(4): A(f's_mov_b32 s{r.sC+b}, {b*256+128}')
    A(f's_mov_b32 s{r.sIt}, 0')
    A('s_waitcnt lgkmcnt(0)')
    stamp(A, r, opt, 5)
    dispatch(A, r, 1, 0)
    if OPT.get('last1', 1):
        A('LAST1:')
        A(f's_cmp_eq_u32 s{r.sIt}, 5')
        A('s_cbranch_scc1 TAIL')
        A(f'v_mov_b32 v{r.LO}, 0x7f000000')
        A(f's_load_dwordx2 s[{r.sP}:{r.sP+1}], s[0:1], 72')
        dispatch(A, r, 1, NE0() + NPW())

def wsi_loads(A, r, vaddr):
    t = r.sT
    A(f's_mul_i32 s{t}, s{r.sWave}, 20480')
    A(f's_add_u32 s{t}, s{t}, {F_WSI if OPT.get("fused") else WS_WSI}')
    for i in range(20):
        A(f'buffer_load_dwordx4 v[{r.W+4*i}:{r.W+4*i+3}], v{vaddr}, s[{r.sWS}:{r.sWS+3}], s{t} offen offset:{(i%4)*1024} {OPT.get("sc","sc1") if OPT.get("fused") else ""}')
        if i % 4 == 3 and i < 19: A(f's_add_u32 s{t}, s{t}, 4096')

def tail2(A, r, opt, D, AD, F, NF, M, KQ, O):
    t = r.sT; G = 192
    A(f's_mul_i32 s{t}, s{r.sBk}, {NPB*1024}')
    A(f's_lshl_b32 s{t+1}, s{r.sWave}, 5')
    A(f's_add_u32 s{t}, s{t}, s{t+1}')
    A(f's_mov_b32 s{t+1}, 0xbfb8aa3b')
    A(f'v_lshlrev_b32 v{O}, 10, v{M}')
    A(f'v_lshl_add_u32 v{O}, v{KQ}, 3, v{O}')
    A(f'v_cmp_gt_u32 vcc, {NPB-32}, v{M}')
    A(f'v_add_u32 v{O+1}, 0x4000, v{O}')
    A(f'v_add_u32 v{O+2}, 0x8000, v{O}')
    A(f'v_mov_b32 v{O+3}, 0x7f000000')
    A(f'v_cndmask_b32 v{O+2}, v{O+3}, v{O+2}, vcc')
    if opt.get('out_mode') == 'lin':
        A(f's_mul_i32 s{t+2}, s{r.sWave}, {5120-32}')
        A(f's_add_u32 s{t}, s{t}, s{t+2}')
        A(f'v_lshlrev_b32 v{O}, 3, v176')
        A(f'v_add_u32 v{O+1}, 2048, v{O}')
        A(f'v_add_u32 v{O+2}, 3072, v{O}')
    A('s_barrier')
    stamp(A, r, opt, 7)
    def job(f, comp, T):
        fp = f if f < 8 else f - 8
        gi, ph, ks = fp >> 2, (fp >> 1) & 1, fp & 1
        g = f'A{gi}' if f < 8 else f'B{gi}' + 'xyz'[comp-1]
        return (f, comp, T, AD + (T*2+ph)*2 + ks, GRP.index(g)*128)
    jobs = [job(f, 0, T) for f in range(8) for T in range(3)]
    for T in range(3): jobs += [job(f, comp, T) for f in range(8, 20) for comp in (1, 2, 3)]
    dreg = lambda comp, T: D + (comp*3 + T)*4
    def out(comp, T):
        d = dreg(comp, T); o = []
        if comp: o += [f'v_mul_f32 v{d+i}, v{d+i}, v{G+T*4+i}' for i in range(4)]
        o += [f'v_cvt_pk_bf16_f32 v{d}, v{d}, v{d+1}', f'v_cvt_pk_bf16_f32 v{d+1}, v{d+2}, v{d+3}',
              f'buffer_store_dwordx2 v[{d}:{d+1}], v{O+T}, s[{r.sOUT}:{r.sOUT+3}], s{t} offen offset:{comp*(512 if opt.get("out_mode") == "lin" else 256)} {opt.get("out_aux","")}']
        if opt.get('out_mode') == 'none': o[-1] = 's_nop 0'
        return o
    gate = []
    for T in range(3):
        g = G + 4*T; d = D + 4*T
        gate += [f'v_mul_f32 v{g+i}, s{t+1}, v{d+i}' for i in range(4)] + [f'v_exp_f32 v{g+i}, v{g+i}' for i in range(4)]
        gate += [f'v_add_f32 v{g+i}, 1.0, v{g+i}' for i in range(4)] + [f'v_rcp_f32 v{g+i}, v{g+i}' for i in range(4)]
    fills = {24 + 3: gate, 24 + 36 + 3: out(0, 0) + out(0, 1) + out(0, 2) + out(1, 0) + out(2, 0) + out(3, 0),
             24 + 72 + 3: out(1, 1) + out(2, 1) + out(3, 1)}
    per = {24 + 3: 2, 24 + 36 + 3: 1, 24 + 72 + 3: 1}
    seen = set(); cur = []; n = 0
    def rd(i):
        f, comp, T, ad, off = jobs[i]
        A(f'ds_read_b128 v[{F+4*(i%NF)}:{F+4*(i%NF)+3}], v{ad} offset:{off}')
    for i in range(NF - 1): rd(i)
    fseen = set()
    for i, (f, comp, T, ad, off) in enumerate(jobs):
        if i + NF - 1 < len(jobs): rd(i + NF - 1)
        w = f's_waitcnt lgkmcnt({min(NF-1, len(jobs)-1-i)})'
        if f not in fseen:
            w = f's_waitcnt vmcnt({19-f}) lgkmcnt({min(NF-1, len(jobs)-1-i)})'; fseen.add(f)
        A(w)
        d = dreg(comp, T)
        c = f'v[{d}:{d+3}]' if (comp, T) in seen else '0'
        seen.add((comp, T))
        A(f'v_mfma_f32_16x16x32_bf16 v[{d}:{d+3}], v[{r.W+4*f}:{r.W+4*f+3}], v[{F+4*(i%NF)}:{F+4*(i%NF)+3}], {c}')
        if i in fills:
            assert not cur
            cur = list(fills[i]); n = per[i]
        for o in cur[:n]: A(o)
        cur = cur[n:]
    assert not cur
    stamp(A, r, opt, 8)
    for comp in (1, 2, 3):
        A.pad_since_mfma(dreg(comp, 2), 8)
        for o in out(comp, 2): A(o)

def tail3(A, r, opt, D, AD, F, NF, L, M, KQ, ROW):
    t = r.sT; G = 192; WA = 204; WB = 205; RA = 206; L16 = 210; RD = 212
    NF = opt.get('nf', 6); F = 96 - 4 * NF; assert F >= AD + 12
    sO = r.sM; sR = r.sM + 2
    aux = opt.get('out_aux', 'sc1')
    A(f's_mov_b32 s{t+1}, 0xbfb8aa3b')
    A0 = A; A = Asm()
    A(f'v_lshrrev_b32 v{WB}, 1, v{KQ}')
    A(f'v_lshl_add_u32 v{WB}, s{r.sWave}, 1, v{WB}')
    A(f'v_and_b32 v{WA}, 7, v{M}')
    A(f'v_xor_b32 v{WB}, v{WB}, v{WA}')
    A(f'v_and_b32 v{WA}, 1, v{KQ}')
    A(f'v_lshlrev_b32 v{WA}, 3, v{WA}')
    A(f'v_lshl_add_u32 v{WB}, v{WB}, 4, v{WA}')
    A(f'v_and_b32 v{WA}, 8, v{M}')
    A(f'v_lshl_add_u32 v{WA}, v{WA}, 4, v{WB}')
    A(f'v_lshl_add_u32 v{WA}, v{M}, 10, v{WA}')
    A(f'v_add_u32 v{WA}, {WR1}, v{WA}')
    A(f'v_add_u32 v{WB}, v{WB}, v{ROW}')
    WC = 220
    A(f'v_and_b32 v{WC}, 8, v{M}')
    A(f'v_mul_u32_u24 v{WC}, 1008, v{WC}')
    A(f'v_sub_u32 v{WC}, v{WA}, v{WC}')
    A(f'v_lshlrev_b32 v{L16}, 4, v{L}')
    A(f's_lshl_b32 s{t+2}, s{r.sWave}, 1')
    A(f's_add_u32 s{t+3}, s{t+2}, 1')
    A(f'v_readlane_b32 s{sR}, v{ROW}, s{t+2}')
    A(f'v_readlane_b32 s{sR+1}, v{ROW}, s{t+3}')
    A(f's_and_b32 s{t+4}, s{t+2}, 7')
    A(f's_lshl_b32 s{t+4}, s{t+4}, 4')
    A(f'v_xor_b32 v{RA}, s{t+4}, v{L16}')
    A(f'v_xor_b32 v{RA+1}, 16, v{RA}')
    A(f'v_add_u32 v{RA+2}, s{sR}, v{RA}')
    A(f'v_add_u32 v{RA+3}, s{sR+1}, v{RA+1}')
    A(f's_lshl_b32 s{t+4}, s{t+2}, 10')
    A(f's_and_b32 s{t+5}, s{t+2}, 8')
    A(f's_lshl_b32 s{t+5}, s{t+5}, 4')
    A(f's_add_u32 s{t+5}, s{t+5}, s{t+4}')
    A(f's_add_u32 s{t+5}, s{t+5}, {WR1}')
    A(f'v_add_u32 v{RA}, s{t+5}, v{RA}')
    A(f'v_add_u32 v{RA+1}, s{t+5}, v{RA+1}')
    A(f's_mul_i32 s{t}, s{r.sBk}, {NPB*1024}')
    A(f's_add_u32 s{sO}, s{t}, s{t+4}')
    A(f's_add_u32 s{sO+1}, s{sO}, 0x4000')
    A(f's_lshl_b32 s{t+4}, s{r.sWave}, 10')
    A(f's_add_u32 s{t}, s{t}, s{t+4}')
    A(f's_add_u32 s{t}, s{t}, 0x8000')
    A(f's_add_u32 s{t+4}, s{t+4}, {WR1}')
    A(f's_lshl_b32 s{t+5}, s{r.sWave}, 4')
    A(f'v_xor_b32 v{L16+1}, s{t+5}, v{L16}')
    A(f'v_add_u32 v{L16+1}, s{t+4}, v{L16+1}')
    setup = [x.strip() for x in A.L]; A = A0
    if not opt.get('tshadow', 1):
        for o in setup: A(o)
        setup = []
    await_rows(A, r)
    stamp(A, r, opt, 7)
    def job(f, comp, T):
        fp = f if f < 8 else f - 8
        gi, ph, ks = fp >> 2, (fp >> 1) & 1, fp & 1
        g = f'A{gi}' if f < 8 else f'B{gi}' + 'xyz'[comp-1]
        return (f, comp, T, AD + (T*2+ph)*2 + ks, GRP.index(g)*128)
    jobs = [job(f, 0, T) for f in range(8) for T in range(3)]
    jobs += [job(f, comp, 0) for f in range(8, 20) for comp in (1, 2, 3)]
    pack = opt.get('pack', 1)
    for T in (1, 2): jobs += [job(f, comp, T) for comp in ((1, 3) if pack and T == 2 else (1, 2, 3)) for f in range(8, 20)]
    dreg = lambda comp, T: D + (comp*3 + T)*4
    def out(comp, T):
        d = dreg(comp, T); o = []
        if comp: o += [f'v_mul_f32 v{d+i}, v{d+i}, v{G+T*4+i}' for i in range(4)]
        o += [f'v_cvt_pk_bf16_f32 v{d}, v{d}, v{d+1}', f'v_cvt_pk_bf16_f32 v{d+1}, v{d+2}, v{d+3}',
              (f'W{T}', f'ds_write_b64 v{WB if T == 1 else WC if pack and (comp, T) == (1, 2) else WA}, v[{d}:{d+1}] offset:{comp*256}')]
        return o
    def send(T, gap=0):
        o = [('wait', f'W{T}'), 's_barrier']
        rows = [(RA, 0, sO, 0), (RA+1, 1024, sO, 1024)] if T == 0 else [(RA+2, 0, sO+1, 0), (RA+3, 0, sO+1, 1024)] if T == 1 else [(L16+1, 0, t, 0)]
        for j, (ra, lo, so, go) in enumerate(rows): o += [(f'R{T}{j}', f'ds_read_b128 v[{RD+4*j}:{RD+4*j+3}], v{ra} offset:{lo}')]
        o += [None] * gap
        for j, (ra, lo, so, go) in enumerate(rows):
            o += [('wait', f'R{T}{j}'), f'buffer_store_dwordx4 v[{RD+4*j}:{RD+4*j+3}], v{L16}, s[{r.sOUT}:{r.sOUT+3}], s{so} offen offset:{go} {aux}']
        return o
    gate = []
    for T in range(3):
        g = G + 4*T; d = D + 4*T
        gate += [f'v_mul_f32 v{g+i}, s{t+1}, v{d+i}' for i in range(4)] + [f'v_exp_f32 v{g+i}, v{g+i}' for i in range(4)]
        gate += [f'v_add_f32 v{g+i}, 1.0, v{g+i}' for i in range(4)] + [f'v_rcp_f32 v{g+i}, v{g+i}' for i in range(4)]
    if pack: gate_fix = [f'v_mov_b32_dpp v{G+8+i}, v{G+8+i} row_ror:8 row_mask:0xf bank_mask:0xc' for i in range(4)]
    J1 = 24 + 36; J2 = J1 + 36
    if opt.get('sched', 1) == 0:
        fills = {24 + 3: (2, gate + out(0, 0)),
                 J1 + 3: (2, out(1, 0) + out(2, 0) + out(3, 0) + [None]*3 + send(0, 2)),
                 J1 + 27: (2, out(0, 1) + out(1, 1) + out(2, 1)),
                 J2 + 3: (1, out(3, 1) + [None]*2 + send(1, 2)),
                 J2 + 24: (2, out(0, 2) + out(1, 2) + [None]*2 + out(2, 2))}
    elif pack:
        gp = NF - 1
        fills = {24 + 3: (2, gate + out(0, 0) + [None] + gate_fix),
                 J1 + 2: (2, out(1, 0) + out(2, 0) + out(3, 0) + [None]*(2*gp+1) + send(0, 2*gp)),
                 J2 - 9: (2, out(0, 1) + out(1, 1) + out(2, 1) + [None]*7 + out(3, 1) + [None]*opt.get('g1', 5) + send(1, opt.get('g2', 6))),
                 J2 + 19: (2, out(0, 2) + out(1, 2))}
    else:
        gp = NF - 1
        fills = {24 + 3: (2, gate + out(0, 0)),
                 J1 + 2: (2, out(1, 0) + out(2, 0) + out(3, 0) + [None]*(2*gp+1) + send(0, 2*gp)),
                 J2 - 6: (2, out(0, 1) + out(1, 1) + out(2, 1) + [None] + out(3, 1) + [None]*(2*gp+1) + send(1, 2*gp)),
                 J2 + 27: (2, out(0, 2) + out(1, 2) + out(2, 2))}
    if setup: fills[0] = (2, setup)
    lg = Q(15)
    def emit(o):
        if o is None: return
        if isinstance(o, str): A(o)
        elif o[0] == 'wait': wait(A, lg=lg.need(o[1]))
        else: A(o[1]); lg.add(o[0])
    seen = set(); cur = []; n = 0
    def rd(i):
        f, comp, T, ad, off = jobs[i]
        A(f'ds_read_b128 v[{F+4*(i%NF)}:{F+4*(i%NF)+3}], v{ad} offset:{off}'); lg.add(f'F{i}')
    for i in range(NF - 1): rd(i)
    fseen = set()
    for i, (f, comp, T, ad, off) in enumerate(jobs):
        if i + NF - 1 < len(jobs): rd(i + NF - 1)
        wait(A, vm=None if f in fseen else 19 - f, lg=lg.need(f'F{i}')); fseen.add(f)
        d = dreg(comp, T)
        c = f'v[{d}:{d+3}]' if (comp, T) in seen else '0'
        seen.add((comp, T))
        A(f'v_mfma_f32_16x16x32_bf16 v[{d}:{d+3}], v[{r.W+4*f}:{r.W+4*f+3}], v[{F+4*(i%NF)}:{F+4*(i%NF)+3}], {c}')
        if i in fills:
            assert not cur, (i, cur)
            n, cur = fills[i]; cur = list(cur)
        for o in cur[:n]:
            if isinstance(o, str) and o.startswith('v_'):
                for src in re.findall(r'\bv(\d+)', o):
                    if int(src) < 48: A.pad_since_mfma(int(src) & ~3, 8)
            emit(o)
        cur = cur[n:]
    assert not cur
    stamp(A, r, opt, 8)
    A.pad_since_mfma(dreg(3, 2), 8)
    for o in out(3, 2) + send(2): emit(o)

ARR = CNT + 61 * 4
def arrive(A):
    A(f'v_mov_b32 v190, {ARR}')
    A('v_mov_b32 v191, 1')
    A('s_mov_b64 exec, 1')
    A('ds_add_u32 v190, v191')
    A('s_mov_b64 exec, -1')

def await_rows(A, r):
    if not OPT.get('split', 0):
        A('s_barrier')
        return
    A('T_wait:')
    A('ds_read_b32 v191, v190')
    A('s_waitcnt lgkmcnt(0)')
    A(f'v_readfirstlane_b32 s{r.sT+2}, v191')
    A(f's_cmp_lt_u32 s{r.sT+2}, 8')
    A('s_cbranch_scc1 T_wait')

def tail(A, r, opt):
    t = r.sT
    D = 0; AD = 48; F = 72; NF = 6
    L = 176; M = 177; KQ = 178; MC = 179; T0 = 180; T1 = 181; ROW = 182; O = 188
    A('TAIL:')
    A('s_setprio 0')
    A('s_waitcnt vmcnt(0) lgkmcnt(0)')
    stamp(A, r, opt, 6)
    split = OPT.get('split', 0)
    def wloads():
        A(f'v_lshrrev_b32 v{L}, 2, v{r.PL}')
        A(f'v_lshlrev_b32 v{T0}, 2, v{r.PL}')
        if OPT.get('fused'):
            kf = __import__(OPT.get('kf', 'kf1'))
            kf.tail_flags(A, r, opt, L)
        wsi_loads(A, r, T0)
    if not split: wloads()
    for rr in range(5):
        A(f's_lshr_b32 s{t+1}, s{r.sM+rr}, 17')
        A(f's_and_b32 s{t+2}, s{t+1}, 128')
        A(f's_and_b32 s{t+1}, s{t+1}, 0x70')
        A(f's_add_u32 s{t+2}, s{t+2}, s{r.sRing}')
        A(f'v_xor_b32 v{T1}, s{t+1}, v{r.PL}')
        A(f'v_add_u32 v{T1}, s{t+2}, v{T1}')
        for wi in range(0, 6, 2):
            if OPT.get('w2', 1): A(f'ds_write2st64_b32 v{T1}, v{r.ST+rr*6+wi}, v{r.ST+rr*6+wi+1} offset0:{rr*6+wi} offset1:{rr*6+wi+1}')
            else:
                for q in range(2): A(f'ds_write_b32 v{T1}, v{r.ST+rr*6+wi+q} offset:{rr*PROW+(wi+q)*256}')
    if split:
        arrive(A)
        wloads()
    A('GEMM:')
    if not OPT.get('last1', 1): A(f's_load_dwordx2 s[{r.sP}:{r.sP+1}], s[0:1], 72')
    A(f'v_and_b32 v{M}, 15, v{L}')
    A(f'v_lshrrev_b32 v{KQ}, 4, v{L}')
    A(f'v_and_b32 v{MC}, 7, v{M}')
    A(f'v_lshlrev_b32 v{T0}, 3, v{M}')
    A(f'v_lshlrev_b32 v{T1}, 3, v{MC}')
    A(f'v_add_u32 v{T0}, {TAB}, v{T0}')
    A(f'v_add_u32 v{T1}, {TAB}, v{T1}')
    A(f'ds_read_b64 v[{ROW}:{ROW+1}], v{T0}')
    A(f'ds_read_b64 v[{ROW+2}:{ROW+3}], v{T0} offset:128')
    A(f'ds_read_b64 v[{ROW+4}:{ROW+5}], v{T1} offset:256')
    A(f'v_xor_b32 v{T0}, v{MC}, v{KQ}')
    A(f'v_and_b32 v{T1}, 8, v{M}')
    A(f'v_xor_b32 v{O}, 4, v{T0}')
    A(f'v_add_u32 v{O+1}, v{O}, v{T1}')
    A(f'v_add_u32 v{T1}, v{T0}, v{T1}')
    A('s_waitcnt lgkmcnt(0)')
    srd(A, r.sOUT, r.sP, N*1024)
    for T in range(3):
        for ph in range(2):
            for ks in range(2):
                p = [[T0, O], [T1, O+1]][T == 2][ks]
                A(f'v_lshl_add_u32 v{AD+(T*2+ph)*2+ks}, v{p}, 4, v{ROW+2*T+ph}')
    if opt.get('tail2', 2) == 2:
        tail3(A, r, opt, D, AD, F, NF, L, M, KQ, ROW)
    elif opt.get('tail2', 2):
        tail2(A, r, opt, D, AD, F, NF, M, KQ, O)
    else:
        A('s_barrier')
        stamp(A, r, opt, 7)
        jobs = []
        for f in range(20):
            fp = f if f < 8 else f - 8
            gi, ph, ks = fp >> 2, (fp >> 1) & 1, fp & 1
            for comp in ([0] if f < 8 else [1, 2, 3]):
                g = f'A{gi}' if f < 8 else f'B{gi}' + 'xyz'[comp-1]
                for T in range(3):
                    jobs.append((f, comp, T, AD + (T*2+ph)*2 + ks, GRP.index(g)*128))
        seen = set()
        def rd(i):
            f, comp, T, ad, off = jobs[i]
            A(f'ds_read_b128 v[{F+4*(i%NF)}:{F+4*(i%NF)+3}], v{ad} offset:{off}')
        for i in range(NF - 1): rd(i)
        lastf = -1
        for i, (f, comp, T, ad, off) in enumerate(jobs):
            if i + NF - 1 < len(jobs): rd(i + NF - 1)
            w = f's_waitcnt lgkmcnt({min(NF-1, len(jobs)-1-i)})'
            if f != lastf:
                w = f's_waitcnt vmcnt({19-f}) lgkmcnt({min(NF-1, len(jobs)-1-i)})'; lastf = f
            A(w)
            d = D + (comp*3 + T)*4
            c = f'v[{d}:{d+3}]' if (comp, T) in seen else '0'
            seen.add((comp, T))
            A(f'v_mfma_f32_16x16x32_bf16 v[{d}:{d+3}], v[{r.W+4*f}:{r.W+4*f+3}], v[{F+4*(i%NF)}:{F+4*(i%NF)+3}], {c}')
        stamp(A, r, opt, 8)
        G = 72
        A(f's_mov_b32 s{t}, 0xbfb8aa3b')
        for i in range(12): A(f'v_mul_f32 v{G+i}, s{t}, v{D+i}')
        for i in range(12): A(f'v_exp_f32 v{G+i}, v{G+i}')
        for i in range(12): A(f'v_add_f32 v{G+i}, 1.0, v{G+i}')
        for i in range(12): A(f'v_rcp_f32 v{G+i}, v{G+i}')
        A(f's_mul_i32 s{t}, s{r.sBk}, {NPB*1024}')
        A(f's_lshl_b32 s{t+1}, s{r.sWave}, 5')
        A(f's_add_u32 s{t}, s{t}, s{t+1}')
        A(f'v_lshlrev_b32 v{O}, 10, v{M}')
        A(f'v_lshl_add_u32 v{O}, v{KQ}, 3, v{O}')
        A(f'v_add_u32 v{O+1}, 0x4000, v{O}')
        A(f'v_add_u32 v{O+2}, 0x8000, v{O}')
        A(f'v_mov_b32 v{O+3}, 0x7f000000')
        A(f'v_cmp_gt_u32 vcc, {NPB-32}, v{M}')
        for comp in range(1, 4):
            for i in range(12):
                A(f'v_mul_f32 v{D+comp*12+i}, v{D+comp*12+i}, v{G+i}')
        A(f'v_cndmask_b32 v{O+2}, v{O+3}, v{O+2}, vcc')
        for comp in range(4):
            for T in range(3):
                d = D + (comp*3 + T)*4
                A(f'v_cvt_pk_bf16_f32 v{d}, v{d}, v{d+1}')
                A(f'v_cvt_pk_bf16_f32 v{d+1}, v{d+2}, v{d+3}')
                A(f'buffer_store_dwordx2 v[{d}:{d+1}], v{O+T}, s[{r.sOUT}:{r.sOUT+3}], s{t} offen offset:{comp*256} {opt.get("out_aux","")}')
    if opt.get('stamps'): A('s_waitcnt vmcnt(0)')
    stamp(A, r, opt, 9)
    stamp_out(A, r, opt)
    if OPT.get('fused'):
        kf = __import__(OPT.get('kf', 'kf1'))
        kf.epoch_store(A, r, opt)

def gen_k2(A, opt):
    OPT.clear(); OPT.update(opt)
    r = alloc()
    name = K2_NAME
    A(f'.globl {name}\n.p2align 8\n.type {name},@function\n{name}:')
    A(f's_cmp_ge_u32 s2, {NB}')
    A('s_cbranch_scc1 K2_end')
    if opt.get('fused'):
        kf = __import__(OPT.get('kf', 'kf1'))
        kf.startup_f(A, r, opt)
    else: startup(A, r, opt)
    between(A, r, opt)
    for phase in range(2):
        for H in HS:
            A('.p2align 6')
            item(A, r, H, phase, opt)
    A('.p2align 6')
    tail(A, r, opt)
    A('K2_end:')
    A('K2_last:')
    A('s_endpgm')
    A('SLOW:')
    from slow import gen_slow
    gen_slow(A, r, opt)
    return dict(name=name, vgpr=256, sgpr=r.ns, lds=LDS_TOTAL)
```
